```python
import torch

def _softmax(x, axis=-1):
    return torch.softmax(x, dim=axis)
def _gelu(x):
    return torch.nn.functional.gelu(x, approximate="tanh")
def _silu(x):
    return torch.nn.functional.silu(x)
def _sigmoid(x):
    return torch.sigmoid(x)
def _layernorm(x, axis=-1, eps=1e-5):
    m = x.mean(dim=axis, keepdim=True)
    v = x.var(dim=axis, keepdim=True, unbiased=False)
    return (x - m) / torch.sqrt(v + eps)
def _scatter_add(tgt, idx, src, axis=0):
    return tgt.clone().index_add_(axis, idx, src)
def _segment_sum(src, seg, n):
    out = torch.zeros((n,) + src.shape[1:], dtype=src.dtype)
    return out.index_add_(0, seg, src)
def _pad(x, pw):
    flat = tuple(v for pair in reversed(pw) for v in pair)
    return torch.nn.functional.pad(x, flat)

kernel_name = 'recurrent_scan__ssm_conv_h3__mixer_token_mlp__prompt'

def setup_inputs():

    _w = (lambda a: (lambda t: t.to(torch.bfloat16) if t.is_floating_point() else t)(torch.as_tensor(a)))
    def _A_setup():
        B, S, D = 1, 2048, 448
        ks = 4
        return {
            "q": _w((lambda *s: torch.randn(*s, dtype=torch.bfloat16) * 0.05)(B, S, D)),
            "k": _w((lambda *s: torch.randn(*s, dtype=torch.bfloat16) * 0.8)(B, S, D)),
            "v": _w((lambda *s: torch.randn(*s, dtype=torch.bfloat16) * 0.8)(B, S, D)),
            "shift_k": _w((lambda *s: torch.randn(*s, dtype=torch.bfloat16) * 0.8)(D, ks) * 0.5),
            "ssm_k": _w((lambda *s: torch.randn(*s, dtype=torch.bfloat16) * 0.8)(D, S) * (1.0 / S ** 0.5)),
            "ssm_D": _w((lambda *s: torch.randn(*s, dtype=torch.bfloat16) * 0.8)(D)),
        }
    _A_in = _A_setup()

    def _B_setup():
        B, S, D, F = 1, 2048, 448, 1792
        return {
            "x": _w((lambda *s: torch.randn(*s, dtype=torch.bfloat16) * 0.05)(B, S, D)),
            "w1": _w((lambda *s: torch.randn(*s, dtype=torch.bfloat16) * 0.8)(S, F) * (S ** -0.5)),
            "b1": _w((lambda *s: torch.randn(*s, dtype=torch.bfloat16) * 12.8)(F) * 0.02),
            "w2": _w((lambda *s: torch.randn(*s, dtype=torch.bfloat16) * 0.2)(F, S) * (F ** -0.5)),
            "b2": _w((lambda *s: torch.randn(*s, dtype=torch.bfloat16) * 1.6)(S) * 0.02),
        }
    _B_in = _B_setup()

    return {
        "A_q": _A_in["q"],
        "A_k": _A_in["k"],
        "A_v": _A_in["v"],
        "A_shift_k": _A_in["shift_k"],
        "A_ssm_k": _A_in["ssm_k"],
        "A_ssm_D": _A_in["ssm_D"],
        "B_x": _B_in["x"],
        "B_w1": _B_in["w1"],
        "B_b1": _B_in["b1"],
        "B_w2": _B_in["w2"],
        "B_b2": _B_in["b2"],
    }

def reference(A_q, A_k, A_v, A_shift_k, A_ssm_k, A_ssm_D, B_x, B_w1, B_b1, B_w2, B_b2):
    def _A_ref(q, k, v, shift_k, ssm_k, ssm_D):
        B, S, D = q.shape
        ks = shift_k.shape[-1]
        k_pad = _pad(k, ((0, 0), (ks - 1, 0), (0, 0)))
        k_shift = torch.zeros_like(k)
        for t in range(ks):
            k_shift = k_shift + k_pad[:, t:t + S, :] * shift_k[:, ks - 1 - t][None, None, :]
        kv = k_shift * v
        L = 2 * S
        kv_pad = _pad(kv, ((0, 0), (0, S), (0, 0)))
        kf_pad = _pad(ssm_k, ((0, 0), (0, S)))
        kv_f = (lambda x, axes=(-2,-1): torch.fft.rfft2(x.float(), dim=axes))(kv_pad[:, None, :, :], axes=(1, 2))
        kf_f = (lambda x, axes=(-2,-1): torch.fft.rfft2(x.float(), dim=axes))(kf_pad[:, None, :], axes=(1, 2))
        kf_f = (lambda x, *d: x.permute(*d))(kf_f, 1, 2, 0)
        y_f = kv_f * kf_f[None, :, :, :]
        y = (lambda x, s, axes=(-2,-1): torch.fft.irfft2(x, s=s, dim=axes).to(torch.bfloat16))(y_f, (1, L), axes=(1, 2))[:, 0, :S, :]
        y = y + kv * ssm_D[None, None, :]
        return q * y

    def _B_ref(x, w1, b1, w2, b2):
        B, S, D = x.shape
        h = _layernorm(x, axis=-1)
        u = torch.einsum("bsd,sf->bdf", h, w1) + b1
        u = _gelu(u)
        y = torch.einsum("bdf,fs->bds", u, w2) + b2
        return (lambda x, *d: x.permute(*d))(y, 0, 2, 1)

    x = A_q
    xn = _layernorm(x, axis=-1)
    s = _A_ref(xn, A_k, A_v, A_shift_k, A_ssm_k, A_ssm_D)
    g = _silu(_B_ref(xn, B_w1, B_b1, B_w2, B_b2))
    return x + s * g
```

```python
KN = "recurrent_scan__ssm_conv_h3__mixer_token_mlp__prompt"
class A:
    def __init__(self): self.l = []
    def __call__(self, s):
        for line in s.split("\n"):
            line = line.strip()
            if line: self.l.append(("" if line.endswith(":") or line.startswith(".") else "  ") + line)
    def text(self): return "\n".join(self.l) + "\n"

def kernel_desc(name, vgpr=256, sgpr=102, accum=256):
    return f""".amdhsa_kernel {name}
  .amdhsa_next_free_vgpr {vgpr}
  .amdhsa_next_free_sgpr {sgpr}
  .amdhsa_accum_offset {accum}
  .amdhsa_group_segment_fixed_size 0
  .amdhsa_kernarg_size 112
  .amdhsa_user_sgpr_count 2
  .amdhsa_user_sgpr_kernarg_segment_ptr 1
  .amdhsa_system_sgpr_workgroup_id_x 1
  .amdhsa_float_denorm_mode_32 3
.end_amdhsa_kernel
"""
def single(body, grid, block, lds, vgpr=256, sgpr=102, accum=256):
    n = KN + "_kernel"
    return (f"; @launch grid=({grid},1,1) block=({block},1,1) lds={lds}\n"
            f'.amdgcn_target "amdgcn-amd-amdhsa--gfx950"\n.text\n.globl {n}\n.p2align 8\n.type {n},@function\n{n}:\n'
            + body + 's_endpgm\n.section .rodata,"a"\n.p2align 6\n' + kernel_desc(n, vgpr, sgpr, accum))
def srd(a, d, base, nbytes):
    a(f"s_mov_b32 s{d}, s{base}\ns_and_b32 s{d+1}, s{base+1}, 0xffff\ns_mov_b32 s{d+2}, {nbytes}\ns_mov_b32 s{d+3}, 0x20000")
```

```python
import re
TRANS = re.compile(r"v_(exp|log|rcp|rsq|sqrt|sin|cos)_f(16|32)|v_rcp_iflag")
def regs(tok):
    tok = tok.strip().lstrip("-").replace("abs(", "").replace("|", "").rstrip(")")
    m = re.fullmatch(r"([vas])(\d+)", tok)
    if m: return {(m.group(1), int(m.group(2)))}
    m = re.fullmatch(r"([vas])\[(\d+):(\d+)\]", tok)
    if m: return {(m.group(1), i) for i in range(int(m.group(2)), int(m.group(3)) + 1)}
    if tok == "vcc": return {("s", "vcc")}
    if tok in ("vcc_lo", "vcc_hi"): return {("s", "vcc")}
    if tok == "exec": return {("s", "exec")}
    if tok == "m0": return {("s", "m0")}
    return set()
class I:
    def __init__(self, text):
        self.text = text
        t = text.split(";")[0].strip()
        self.mn = t.split()[0] if t else ""
        rest = t[len(self.mn):].strip()
        ops = [o.strip() for o in rest.split(",")] if rest else []
        mods = ""
        if ops:
            parts = ops[-1].split(None, 1)
            if parts:
                ops[-1] = parts[0]; mods = parts[1] if len(parts) > 1 else ""
        clean = []
        for o in ops:
            clean.append(o.split()[0] if o.split() else o)
        self.ops = clean; self.mods = rest
        mn = self.mn
        self.valu = mn.startswith("v_") and not mn.startswith("v_mfma")
        self.mfma = mn.startswith("v_mfma")
        self.ds = mn.startswith("ds_"); self.vmem = mn.startswith(("buffer_", "global_", "flat_"))
        self.salu = mn.startswith("s_")
        self.w = set(); self.r = set()
        R = [regs(o) for o in self.ops]
        if self.mfma:
            self.w = R[0]; self.A = R[1]; self.B = R[2]; self.C = R[3]; self.r = R[1] | R[2] | R[3]
            self.passes = 8 if "32x32x16" in mn else 4
        elif self.valu:
            if mn.startswith("v_cmp"):
                self.w = R[0]; self.r = set().union(*R[1:])
            elif mn.startswith(("v_readlane", "v_readfirstlane")):
                self.w = R[0]; self.r = set().union(*R[1:])
            elif mn.startswith("v_permlane") and "swap" in mn:
                self.w = R[0] | R[1]; self.r = R[0] | R[1]
            elif mn.startswith(("v_add_co", "v_sub_co", "v_addc_co", "v_subb_co", "v_mad_u64", "v_div_scale")):
                self.w = R[0] | R[1]; self.r = set().union(*R[2:])
            else:
                self.w = R[0]; self.r = set().union(*R[1:]) if len(R) > 1 else set()
                if mn.startswith(("v_fmac", "v_mac", "v_dot2c", "v_pk_fmac")) or "dpp" in mn or "sdwa" in mn or mn.startswith("v_writelane"): self.r |= R[0]
                if mn.startswith("v_cndmask") and len(self.ops) == 3: self.r |= {("s", "vcc")}
        elif self.ds:
            if mn.startswith(("ds_read", "ds_bpermute", "ds_permute", "ds_swizzle")):
                self.w = R[0]; self.r = set().union(*R[1:])
            else:
                self.r = set().union(*R)
        elif self.vmem:
            if "load" in mn and " lds" not in (" " + rest) and "load_lds" not in mn:
                self.w = R[0]; self.r = set().union(*R[1:])
            elif "atomic" in mn and "sc0" in rest:
                self.w = R[0]; self.r = set().union(*R)
            else:
                self.r = set().union(*R) if R else set()
            self.lds = (" lds" in (" " + rest)) or "load_lds" in mn
            self.store_data = R[0] if ("store" in mn and mn.startswith("buffer") and mn.endswith(("x3", "x4"))) else (R[1] if ("store" in mn and mn.endswith(("x3", "x4"))) else set())
        elif self.salu:
            if mn.startswith(("s_cmp", "s_cbranch", "s_branch", "s_waitcnt", "s_nop", "s_barrier", "s_sleep", "s_endpgm", "s_setprio", "s_bitcmp")):
                self.r = set().union(*R) if R else set()
            else:
                self.w = R[0] if R else set(); self.r = set().union(*R[1:]) if len(R) > 1 else set()
                if "saveexec" in mn: self.w |= {("s", "exec")}
        self.dpp = "dpp" in mn or "row_" in rest or "quad_perm" in rest
        self.states = 1
        if mn == "s_nop": self.states = int(self.ops[0], 0) + 1
def need(p, c):
    n = 0
    vw = {x for x in p.w if x[0] in "va"}; sw = {x for x in p.w if x[0] == "s"}
    if p.valu:
        if vw & c.r:
            if c.valu and c.dpp: n = max(n, 2)
            if c.mn.startswith(("v_readlane", "v_readfirstlane")): n = max(n, 1)
            if c.mn.startswith("v_permlane"): n = max(n, 2)
            if c.mfma: n = max(n, 2)
            if TRANS.match(p.mn) and c.valu and not TRANS.match(c.mn): n = max(n, 1)
            if ("sdwa" in p.mn or "op_sel:" in p.mods) and c.valu: n = max(n, 1)
        if sw & c.r:
            if c.vmem: n = max(n, 5)
            if c.valu: n = max(n, 4 if c.mn.startswith(("v_readlane", "v_writelane")) else 2)
            if c.salu: n = max(n, 1)
        if ("s", "exec") in sw and c.valu and c.dpp: n = max(n, 5)
        if ("s", "exec") in sw and c.mfma: n = max(n, 4)
    if p.valu and p.mn.startswith("v_pk_") and ("op_sel" in p.mods or "neg_" in p.mods) and c.mfma: n = max(n, 2)
    if p.mfma:
        big = {4: 8, 8: 12}[p.passes]
        if c.mfma:
            if p.w & (c.A | c.B): n = max(n, big)
            if p.w & c.C:
                if not (p.w == c.C and p.passes == c.passes): n = max(n, {4: 6, 8: 10}[p.passes])
            elif p.w & c.w: n = max(n, big)
        else:
            if p.w & (c.r | c.w): n = max(n, big)
            if c.valu and (p.C & c.w): n = max(n, {4: 3, 8: 7}[p.passes])
    if p.salu and ("s", "m0") in p.w and c.vmem and getattr(c, "lds", False): n = max(n, 1)
    if p.vmem and getattr(p, "store_data", None) and (p.store_data & c.w): n = max(n, 2 if c.valu else 1)
    return n
def fix(lines):
    out = []; hist = []
    added = 0
    for ln in lines:
        s = ln.strip()
        if not s or s.startswith((";", ".")) or s.endswith(":"):
            out.append(ln); continue
        c = I(s)
        req = 0; dist = 0
        for p in reversed(hist):
            n = need(p, c)
            if n - dist > req: req = n - dist
            dist += p.states
            if dist >= 20: break
        if req > 0:
            k = req
            while k > 0:
                m = min(k, 16); out.append(f"  s_nop {m-1}"); hist.append(I(f"s_nop {m-1}")); k -= m; added += 1
        out.append(ln); hist.append(c)
        if len(hist) > 40: hist = hist[-40:]
    return out, added
```

```python
import sys
from asmlib import A, KN, kernel_desc
import hazard

HF, UF, KVT, YT, ST, FL = 0x0, 0x200000, 0x400000, 0x600000, 0x800000, 0x810000
WS_SZ = 0x1000000
FL_LN, FL_KV, FL_U, FL_Y, FL_EP = FL, FL + 0x400, FL + 0x800, FL + 0xC00, FL + 0x1000
STAMP = 0x900000
KC, KVS, UR, YS, HS, RING = 0, 33280, 42496, 51712, 60928, 91648
XCH1, XCH2, XCHC = 42496, 91648, 60928
CP = 4160; HSP = 1040; TP = 144
LDS_SZ = 157184
sX, sK, sV, sSHK, sSSMK, sSSMD, sW1, sB1, sW2, sB2, sOUT, sWS = [32 + 4 * i for i in range(12)]
sWV, sDT1, sFT, sDT2, sST, sTAG = 80, 81, 82, 83, 84, 85
sHAS1, sHAS2 = 86, 87
def S(b): return f"s[{b}:{b+3}]"
def V(b, n=4): return f"v[{b}:{b+n-1}]" if n > 1 else f"v{b}"
def AR(b, n=4): return f"a[{b}:{b+n-1}]"
vL, vL16 = 1, 2
vDE, vDO = 3, 4
vT = 5
ACC = 32; HR = 96

class G:
    def __init__(self, persist, opt=None):
        self.a = A(); self.persist = persist; self.n = 0; self.opt = opt or {}
        self.sc = " sc1" if persist else ""
    def lab(self, p="L"):
        self.n += 1; return f"{p}{self.n}"
    def stamp(self, idx):
        if not self.opt.get("stamps"): return
        a = self.a
        a(f"s_memrealtime s[{88}:{89}]\ns_waitcnt lgkmcnt(0)")
        a(f"v_mov_b32 v30, s88\ns_lshl_b32 s90, s2, 2\ns_add_u32 s90, s90, s{sWV}\ns_lshl_b32 s90, s90, 7\ns_add_u32 s90, s90, {STAMP + idx*4}\nv_mov_b32 v31, 0")
        a(f"s_mov_b64 s[92:93], exec\ns_mov_b64 exec, 1\nbuffer_store_dword v30, v31, {S(sWS)}, s90 offen\ns_mov_b64 exec, s[92:93]")

    def setup(self, nwg, lend):
        a = self.a
        a(f"s_cmp_ge_u32 s2, {nwg}\ns_cbranch_scc1 {lend}")
        a("s_load_dwordx16 s[4:19], s[0:1], 0\ns_load_dwordx8 s[20:27], s[0:1], 64\ns_load_dwordx4 s[28:31], s[0:1], 96")
        a(f"v_and_b32 v{vL}, 63, v0\nv_lshrrev_b32 v{vL16}, 6, v0\ns_nop 0\nv_readfirstlane_b32 s{sWV}, v{vL16}\nv_lshlrev_b32 v{vL16}, 4, v{vL}")
        mp = self.opt.get("map", "a1")
        a("s_and_b32 s94, s2, 7\ns_lshr_b32 s95, s2, 3")
        a("s_mul_i32 s96, s95, 37\ns_lshr_b32 s96, s96, 8\ns_mul_i32 s97, s96, 7\ns_sub_u32 s97, s95, s97")
        if mp == "a1":
            a(f"s_mov_b32 s{sDT1}, s97\ns_mov_b32 s{sDT2}, s97\ns_lshl_b32 s98, s96, 3\ns_add_u32 s{sFT}, s98, s94\ns_mov_b32 s{sST}, s{sFT}")
            a(f"s_cmp_lt_u32 s{sFT}, 28\ns_cselect_b32 s{sHAS1}, 1, 0\ns_cmp_lt_u32 s{sST}, 32\ns_cselect_b32 s{sHAS2}, 1, 0")
        elif mp == "a2":
            a("s_lshr_b32 s98, s94, 2\ns_and_b32 s99, s94, 3\ns_sub_u32 s100, 4, s98\ns_lshl_b32 s98, s98, 2")
            a(f"s_cmp_lt_u32 s96, s100\ns_cselect_b32 s{sHAS1}, 1, 0\ns_add_u32 s{sDT1}, s98, s96\ns_mul_i32 s{sFT}, s99, 7\ns_add_u32 s{sFT}, s{sFT}, s97")
            a(f"s_lshr_b32 s96, s95, 3\ns_and_b32 s97, s95, 7\ns_cmp_lt_u32 s96, s100\ns_cselect_b32 s{sHAS2}, 1, 0\ns_add_u32 s{sDT2}, s98, s96\ns_lshl_b32 s{sST}, s99, 3\ns_add_u32 s{sST}, s{sST}, s97")
        a("s_waitcnt lgkmcnt(0)")
        for d, b, n in ((sX, 4, 1835008), (sK, 6, 1835008), (sV, 8, 1835008), (sSHK, 10, 3584), (sSSMK, 12, 1835008), (sSSMD, 14, 896),
                        (sW1, 18, 7340032), (sB1, 20, 3584), (sW2, 22, 7340032), (sB2, 24, 4096), (sOUT, 26, 1835008), (sWS, 30, WS_SZ)):
            a(f"s_mov_b32 s{d}, s{b}\ns_and_b32 s{d+1}, s{b+1}, 0xffff\ns_mov_b32 s{d+2}, {n}\ns_mov_b32 s{d+3}, 0x20000")

    def ln_load(self):
        a = self.a
        a(f"v_cmp_gt_u32 vcc, 56, v{vL}\nv_mov_b32 v9, 0x80000000\nv_cndmask_b32 v9, v9, v{vL16}, vcc\nv_cndmask_b32 v10, 0, 1.0, vcc\nv_mov_b32 v11, 0x3b124925")
        a(f"s_lshl_b32 s4, s2, 3\ns_lshl_b32 s5, s{sWV}, 1\ns_add_u32 s4, s4, s5\ns_mul_i32 s5, s4, 896")
        fl = self.opt.get("xflags", "")
        a(f"buffer_load_dwordx4 {V(32)}, v9, {S(sX)}, s5 offen {fl}\nbuffer_load_dwordx4 {V(64)}, v9, {S(sX)}, s5 offen offset:896 {fl}")
    def ln_rowops(self, b, sr):
        X, F, Gd, T, M, RS, Vv, P = b, b + 4, b + 12, b + 20, b + 24, b + 26, b + 28, b + 29
        o = []
        def unpack(dst, src):
            for j in range(4):
                o.append(f"v_lshlrev_b32 v{dst+2*j}, 16, v{src+j}"); o.append(f"v_and_b32 v{dst+2*j+1}, 0xffff0000, v{src+j}")
        def red():
            for m in ("row_shr:1 row_mask:0xf", "row_shr:2 row_mask:0xf", "row_shr:4 row_mask:0xf", "row_shr:8 row_mask:0xf", "row_bcast:15 row_mask:0xa", "row_bcast:31 row_mask:0xc"):
                o.append(f"v_add_f32_dpp v{T}, v{T}, v{T} {m} bank_mask:0xf")
            o.append(f"v_readlane_b32 s{sr}, v{T}, 63")
        def p2(r): return f"v[{r}:{r+1}]"
        def norm(first, save):
            o.append(f"v_pk_add_f32 {p2(T)}, {p2(F)}, {p2(F+2)}"); o.append(f"v_pk_add_f32 {p2(T+2)}, {p2(F+4)}, {p2(F+6)}")
            o.append(f"v_pk_add_f32 {p2(T)}, {p2(T)}, {p2(T+2)}"); o.append(f"v_add_f32 v{T}, v{T}, v{T+1}")
            if not first: o.append(f"v_mul_f32 v{T}, v{T}, v10")
            red()
            o.append(f"v_mul_f32 v{M}, s{sr}, v11")
            for j in range(4): o.append(f"v_pk_add_f32 {p2(Gd+2*j)}, {p2(F+2*j)}, {p2(M)} op_sel_hi:[1,0] neg_lo:[0,1] neg_hi:[0,1]")
            o.append(f"v_pk_mul_f32 {p2(T)}, {p2(Gd)}, {p2(Gd)}")
            for j in range(1, 4): o.append(f"v_pk_fma_f32 {p2(T)}, {p2(Gd+2*j)}, {p2(Gd+2*j)}, {p2(T)}")
            o.append(f"v_add_f32 v{T}, v{T}, v{T+1}"); o.append(f"v_mul_f32 v{T}, v{T}, v10")
            red()
            o.append(f"v_mul_f32 v{Vv}, s{sr}, v11")
            o.append(f"v_cvt_pk_bf16_f32 v{P}, v{Vv}, v{M}")
            o.append(f"v_lshlrev_b32 v{Vv}, 16, v{P}"); o.append(f"v_and_b32 v{M}, 0xffff0000, v{P}")
            o.append(f"v_add_f32 v{Vv}, 0x3727c5ac, v{Vv}")
            o.append(f"v_cvt_pk_bf16_f32 v{P}, v{Vv}, v{Vv}"); o.append(f"v_lshlrev_b32 v{Vv}, 16, v{P}")
            o.append(f"v_sqrt_f32 v{Vv}, v{Vv}")
            o.append(f"v_cvt_pk_bf16_f32 v{P}, v{Vv}, v{Vv}"); o.append(f"v_lshlrev_b32 v{Vv}, 16, v{P}")
            o.append(f"v_rcp_f32 v{RS}, v{Vv}")
            for j in range(4): o.append(f"v_pk_add_f32 {p2(Gd+2*j)}, {p2(F+2*j)}, {p2(M)} op_sel_hi:[1,0] neg_lo:[0,1] neg_hi:[0,1]")
            for j in range(4): o.append(f"v_cvt_pk_bf16_f32 v{X+j}, v{Gd+2*j}, v{Gd+2*j+1}")
            unpack(F, X)
            for j in range(4): o.append(f"v_pk_mul_f32 {p2(F+2*j)}, {p2(F+2*j)}, {p2(RS)} op_sel_hi:[1,0]")
            for j in range(4): o.append(f"v_cvt_pk_bf16_f32 v{X+j}, v{F+2*j}, v{F+2*j+1}")
            if save:
                o.append(f"v_mov_b32 v{b+30}, v{M}"); o.append(f"v_mov_b32 v{b+31}, v{RS}")
        unpack(F, X); norm(True, True); unpack(F, X); norm(False, False)
        return o
    def ln_compute(self, vm_after):
        a = self.a
        a(f"s_waitcnt vmcnt({vm_after})")
        oa, ob = self.ln_rowops(32, 6), self.ln_rowops(64, 7)
        for x, y in zip(oa, ob): a(x); a(y)
        a(f"s_lshl_b32 s6, s{sWV}, 1\ns_mul_i32 s6, s6, {HSP}\ns_add_u32 s6, s6, {HS}\nv_add_u32 v12, s6, v{vL16}")
        a(f"ds_write_b128 v12, {V(32)}\nds_write_b128 v12, {V(64)} offset:{HSP}")
        a(f"s_lshl_b32 s6, s4, 3\ns_add_u32 s6, s6, {ST}\nv_mov_b32 v13, 0\nv_mov_b32 v60, v94\nv_mov_b32 v61, v95")
        a(f"v_mov_b32 v58, v62\nv_mov_b32 v59, v63")
        a(f"s_mov_b64 exec, 1\nbuffer_store_dwordx4 {V(58)}, v13, {S(sWS)}, s6 offen{self.sc}\ns_mov_b64 exec, -1")
        a(f"v_bfe_u32 v12, v{vL}, 2, 2\nv_mul_u32_u24 v12, {HSP}, v12\nv_lshrrev_b32 v13, 4, v{vL}\nv_lshlrev_b32 v14, 5, v13\nv_add_u32 v12, v12, v14")
        a(f"v_and_b32 v14, 3, v{vL}\nv_lshlrev_b32 v14, 3, v14\nv_add_u32 v12, v12, v14\ns_lshl_b32 s6, s{sWV}, 7\ns_add_u32 s6, s6, {HS}\nv_add_u32 v12, s6, v12")
        a(f"v_lshlrev_b32 v13, 10, v13\nv_and_b32 v14, 15, v{vL}\nv_lshlrev_b32 v14, 4, v14\nv_add_u32 v13, v13, v14")
        a(f"s_lshr_b32 s6, s2, 2\ns_lshl_b32 s7, s{sWV}, 6\ns_add_u32 s6, s6, s7\ns_lshl_b32 s6, s6, 12\ns_and_b32 s7, s2, 3\ns_lshl_b32 s7, s7, 8\ns_add_u32 s6, s6, s7")
        if HF: a(f"s_add_u32 s6, s6, {HF}")
        a(f"s_add_u32 s7, s6, {4*64*4096}")
        a("s_waitcnt lgkmcnt(0)\ns_barrier")
        a(f"ds_read_b64_tr_b16 v[36:37], v12\nds_read_b64_tr_b16 v[38:39], v12 offset:{4*HSP}")
        a(f"ds_read_b64_tr_b16 v[40:41], v12 offset:512\nds_read_b64_tr_b16 v[42:43], v12 offset:{4*HSP+512}")
        a(f"s_waitcnt lgkmcnt(2)\nbuffer_store_dwordx4 {V(36)}, v13, {S(sWS)}, s6 offen{self.sc}")
        l = self.lab()
        a(f"s_waitcnt lgkmcnt(0)\ns_cmp_eq_u32 s{sWV}, 3\ns_cbranch_scc1 {l}\nbuffer_store_dwordx4 {V(40)}, v13, {S(sWS)}, s7 offen{self.sc}\n{l}:")

    KR, VR, SKR = 96, 116, 124
    def kv_load(self):
        a = self.a
        a(f"v_and_b32 v14, 7, v0\nv_lshrrev_b32 v15, 3, v0\nv_lshlrev_b32 v16, 4, v14\nv_mul_u32_u24 v17, 1792, v15\nv_add_u32 v17, v17, v16")
        a(f"s_mul_i32 s8, s{sST}, {64*896}\ns_lshl_b32 s9, s{sDT2}, 7\ns_add_u32 s8, s8, s9\nv_add_u32 v17, s8, v17")
        fl = self.opt.get("kvflags", "")
        for j in range(5):
            if j < 3:
                a(f"v_subrev_u32 v18, {(3-j)*896}, v17\nbuffer_load_dwordx4 {V(self.KR+4*j)}, v18, {S(sK)}, 0 offen {fl}")
            else:
                a(f"buffer_load_dwordx4 {V(self.KR+4*j)}, v17, {S(sK)}, 0 offen offset:{(j-3)*896} {fl}")
        for j in range(2):
            a(f"buffer_load_dwordx4 {V(self.VR+4*j)}, v17, {S(sV)}, 0 offen offset:{j*896} {fl}")
        a(f"v_lshlrev_b32 v18, 6, v14\ns_lshl_b32 s9, s{sDT2}, 9")
        for j in range(4):
            a(f"buffer_load_dwordx4 {V(self.SKR+4*j)}, v18, {S(sSHK)}, s9 offen offset:{16*j}")
        return 11
    def kv_compute(self, vm_after, store=True):
        a = self.a
        KF, VF, SF, O = 140, 180, 196, 228
        p2 = lambda r: f"v[{r}:{r+1}]"
        a(f"s_waitcnt vmcnt({vm_after})")
        for j in range(20):
            a(f"v_lshlrev_b32 v{KF+2*j}, 16, v{self.KR+j}\nv_and_b32 v{KF+2*j+1}, 0xffff0000, v{self.KR+j}")
        for j in range(8):
            a(f"v_lshlrev_b32 v{VF+2*j}, 16, v{self.VR+j}\nv_and_b32 v{VF+2*j+1}, 0xffff0000, v{self.VR+j}")
        for e in range(8):
            a(f"v_lshlrev_b32 v{SF+e}, 16, v{self.SKR+2*e}\nv_and_b32 v{SF+8+e}, 0xffff0000, v{self.SKR+2*e}")
            a(f"v_lshlrev_b32 v{SF+16+e}, 16, v{self.SKR+2*e+1}\nv_and_b32 v{SF+24+e}, 0xffff0000, v{self.SKR+2*e+1}")
        for t in (3, 2, 1, 0):
            for r in range(2):
                for e in range(0, 8, 2):
                    k = KF + 8 * (r + 3 - t) + e; o = O + 8 * r + e
                    if t == 3: a(f"v_pk_mul_f32 {p2(o)}, {p2(k)}, {p2(SF+8*t+e)}")
                    else: a(f"v_pk_fma_f32 {p2(o)}, {p2(k)}, {p2(SF+8*t+e)}, {p2(o)}")
        for j in range(8): a(f"v_cvt_pk_bf16_f32 v{self.KR+j}, v{O+2*j}, v{O+2*j+1}")
        for j in range(8): a(f"v_lshlrev_b32 v{O+2*j}, 16, v{self.KR+j}\nv_and_b32 v{O+2*j+1}, 0xffff0000, v{self.KR+j}")
        for j in range(8): a(f"v_pk_mul_f32 {p2(O+2*j)}, {p2(O+2*j)}, {p2(VF+2*j)}")
        for j in range(8): a(f"v_cvt_pk_bf16_f32 v{self.KR+j}, v{O+2*j}, v{O+2*j+1}")
        a(f"v_and_b32 v14, 7, v0\nv_lshrrev_b32 v15, 3, v0\nv_mul_u32_u24 v16, {2*TP}, v15\nv_lshlrev_b32 v14, 4, v14\nv_add_u32 v16, v16, v14")
        a(f"ds_write_b128 v16, {V(self.KR)} offset:{KVS}\nds_write_b128 v16, {V(self.KR+4)} offset:{KVS+TP}")
        if not store:
            a("s_waitcnt lgkmcnt(0)\ns_barrier"); return
        a(f"v_lshrrev_b32 v14, 4, v{vL}\nv_bfe_u32 v15, v{vL}, 2, 2\nv_lshl_add_u32 v15, v14, 3, v15\nv_sub_u32 v15, 27, v15\nv_mul_u32_u24 v15, {TP}, v15")
        a(f"v_and_b32 v16, 3, v{vL}\nv_lshlrev_b32 v16, 3, v16\ns_lshl_b32 s8, s{sWV}, 5\nv_add3_u32 v15, v15, v16, s8")
        a(f"v_and_b32 v16, 15, v{vL}\nv_lshlrev_b32 v16, 12, v16\nv_lshl_add_u32 v16, v14, 4, v16")
        a(f"s_lshl_b32 s8, s{sDT2}, 2\ns_add_u32 s8, s8, s{sWV}\ns_lshl_b32 s8, s8, 16\ns_lshl_b32 s9, s{sST}, 7\ns_sub_u32 s8, s8, s9\ns_add_u32 s8, s8, {KVT + 3968}")
        a("s_waitcnt lgkmcnt(0)\ns_barrier")
        for j in range(2):
            for h in range(2):
                a(f"ds_read_b64_tr_b16 v[{140+4*j+2*h}:{141+4*j+2*h}], v15 offset:{KVS + (32*(1-j) + 4*(1-h))*TP}")
        a(f"s_waitcnt lgkmcnt(2)\nbuffer_store_dwordx4 {V(140)}, v16, {S(sWS)}, s8 offen{self.sc}")
        a(f"s_waitcnt lgkmcnt(0)\nbuffer_store_dwordx4 {V(144)}, v16, {S(sWS)}, s8 offen offset:64{self.sc}")

    def kc_load(self):
        a = self.a
        a(f"s_lshl_b32 s8, s{sDT2}, 5\ns_add_u32 s8, s8, s{sST}\ns_lshl_b32 s8, s8, 13")
        a(f"s_lshr_b32 s9, s{sWV}, 1\ns_and_b32 s10, s{sWV}, 1\ns_lshl_b32 s11, s9, 12\ns_add_u32 s11, s11, s8\ns_lshl_b32 s12, s10, 2\ns_add_u32 s11, s11, s12")
        a(f"s_mul_i32 s12, s{sWV}, {2*CP}\ns_add_u32 s12, s12, {KC+32}")
        fl = self.opt.get("kvflags", "")
        for p in range(2):
            if p: a(f"s_add_u32 s11, s11, 2\ns_add_u32 s12, s12, {CP}")
            a("s_mov_b32 m0, s12")
            for pc in range(4):
                a(f"buffer_load_dwordx4 v{vL16}, {S(sSSMK)}, s11 offen offset:{pc*1024} {fl} lds")
        a(f"v_bfe_u32 v19, v{vL}, 2, 1\nv_lshlrev_b32 v19, 12, v19\nbuffer_load_dwordx2 v[20:21], v19, {S(sSSMK)}, s8 offen")
        return 9
    def kc_fix(self):
        a = self.a
        a(f"v_and_b32 v19, 3, v{vL}\nv_lshlrev_b32 v22, 4, v19\nv_sub_u32 v22, 48, v22\nv_lshlrev_b64 v[26:27], v22, v[20:21]\nv_lshlrev_b64 v[26:27], 16, v[26:27]")
        a(f"v_mov_b32 v20, 0\nv_mov_b32 v21, 0\nv_mov_b32 v22, 0\nv_mov_b32 v23, 0\nv_mov_b32 v24, 0\nv_mov_b32 v25, 0")
        a(f"v_and_b32 v19, 7, v{vL}\nv_mul_u32_u24 v19, {CP}, v19")
        a(f"s_mov_b64 exec, 0xff\nds_write_b128 v19, v[20:23] offset:{KC}\nds_write_b128 v19, v[24:27] offset:{KC+16}\ns_mov_b64 exec, -1")
    def ur_load(self):
        a = self.a
        a(f"s_lshl_b32 s8, s{sDT2}, 5\ns_add_u32 s8, s8, s{sST}\ns_lshl_b32 s8, s8, 13\ns_lshl_b32 s9, s{sWV}, 11\ns_add_u32 s8, s8, s9\ns_add_u32 s8, s8, {KVT}")
        a(f"buffer_load_dwordx4 {V(240)}, v{vL16}, {S(sWS)}, s8 offen{self.sc}\nbuffer_load_dwordx4 {V(244)}, v{vL16}, {S(sWS)}, s8 offen offset:1024{self.sc}")
        return 2
    def ur_write(self):
        a = self.a
        a(f"s_lshr_b32 s8, s{sWV}, 1\ns_mul_i32 s8, s8, 4608\ns_and_b32 s9, s{sWV}, 1\ns_lshl_b32 s10, s9, 11\ns_add_u32 s10, s10, s8\nv_add_u32 v19, s10, v{vL16}")
        a(f"ds_write_b128 v19, {V(240)} offset:{UR}\nds_write_b128 v19, {V(244)} offset:{UR+1024}")
        a(f"s_lshl_b32 s9, s9, 8\ns_add_u32 s8, s8, s9\nv_add_u32 v19, s8, v{vL16}\nv_mov_b32 v20, 0\nv_mov_b32 v21, 0\nv_mov_b32 v22, 0\nv_mov_b32 v23, 0")
        a(f"s_mov_b64 exec, 0xffff\nds_write_b128 v19, v[20:23] offset:{UR+4096}\ns_mov_b64 exec, -1")
    def conv(self, filler=None):
        a = self.a
        CA, AS, BS = 32, 64, 128
        a(f"v_and_b32 v14, 15, v{vL}\nv_lshrrev_b32 v15, 4, v{vL}\nv_add_u32 v16, 1, v14\nv_and_b32 v17, 3, v16\nv_mul_u32_u24 v17, {CP}, v17\nv_and_b32 v16, 28, v16")
        a(f"v_lshl_add_u32 v16, v15, 3, v16\nv_lshl_add_u32 v12, v16, 1, v17")
        a(f"s_lshr_b32 s8, s{sWV}, 1\ns_and_b32 s9, s{sWV}, 1\ns_mul_i32 s10, s8, {4*CP}\ns_lshl_b32 s11, s9, 8\ns_add_u32 s10, s10, s11\ns_add_u32 s10, s10, {KC}\nv_add_u32 v12, s10, v12")
        a(f"v_lshlrev_b32 v16, 1, v14\nv_sub_u32 v16, v15, v16\nv_add_u32 v16, 30, v16\nv_lshlrev_b32 v13, 4, v16")
        a(f"s_mul_i32 s10, s8, 4608\ns_add_u32 s10, s10, s11\ns_add_u32 s10, s10, {UR}\nv_add_u32 v13, s10, v13")
        for i in range(32): a(f"v_mov_b32 v{CA+i}, 0")
        a("s_waitcnt lgkmcnt(0)\ns_barrier")
        def reads(r):
            s = r & 1; o = []
            for k in range(8):
                o.append(f"ds_read_b64 v[{AS+32*s+4*k}:{AS+32*s+4*k+1}], v12 offset:{64*(8*k+r)}")
                o.append(f"ds_read_b64 v[{AS+32*s+4*k+2}:{AS+32*s+4*k+3}], v12 offset:{64*(8*k+r)+8}")
                o.append(f"ds_read_b128 {V(BS+32*s+4*k)}, v13 offset:{(256*(7-k)+32*r)*2}")
            return o
        for x in reads(0): a(x)
        for r in range(4):
            s = r & 1
            nxt = reads(r + 1) if r < 3 else []
            a("s_waitcnt lgkmcnt(0)")
            mf = [(pp, q) for t in range(8) for pp in range(t + 1) for q in [t - pp]]
            mf.sort(key=lambda x: (x[0], x[1]))
            for k, (pp, q) in enumerate(mf):
                a(f"v_mfma_f32_16x16x32_bf16 {V(CA+4*(pp+q))}, {V(AS+32*s+4*pp)}, {V(BS+32*s+4*q)}, {V(CA+4*(pp+q))}")
                if k < len(nxt): a(nxt[k])
        a(f"s_lshl_b32 s10, s{sWV}, 12\ns_add_u32 s10, s10, {XCHC}\nv_add_u32 v14, s10, v{vL16}\ns_xor_b32 s10, s{sWV}, 1\ns_lshl_b32 s10, s10, 12\ns_add_u32 s10, s10, {XCHC}\nv_add_u32 v15, s10, v{vL16}")
        l1, l2 = self.lab(), self.lab()
        a(f"s_cmp_eq_u32 s9, 0\ns_cbranch_scc1 {l1}")
        for k in range(4): a(f"ds_write_b128 v14, {V(CA+4*k)} offset:{1024*k}")
        for k in range(16): a(f"v_mov_b32 v{CA+k}, v{CA+16+k}")
        a(f"s_branch {l2}\n{l1}:\ns_nop 7")
        for k in range(4): a(f"ds_write_b128 v14, {V(CA+16+4*k)} offset:{1024*k}")
        a(f"{l2}:\ns_waitcnt lgkmcnt(0)\ns_barrier")
        for k in range(4): a(f"ds_read_b128 {V(64+4*k)}, v15 offset:{1024*k}")
        a(f"v_bfe_u32 v16, v{vL}, 4, 1\nv_lshlrev_b32 v16, 9, v16\nv_and_b32 v17, 15, v{vL}\nv_lshl_add_u32 v16, v17, 5, v16\nv_lshrrev_b32 v17, 5, v{vL}\nv_lshl_add_u32 v16, v17, 4, v16")
        a(f"s_lshl_b32 s10, s{sDT2}, 5\ns_add_u32 s10, s10, s{sST}\ns_lshl_b32 s10, s10, 13\ns_lshl_b32 s11, s{sWV}, 11\ns_add_u32 s10, s10, s11\ns_add_u32 s10, s10, {YT}")
        a("s_waitcnt lgkmcnt(0)")
        for k in range(8): a(f"v_pk_add_f32 v[{CA+2*k}:{CA+2*k+1}], v[{CA+2*k}:{CA+2*k+1}], v[{64+2*k}:{64+2*k+1}]")
        for b in range(4):
            for h in range(2): a(f"v_cvt_pk_bf16_f32 v{80+4*(b>>1)+2*(b&1)+h}, v{CA+4*b+2*h}, v{CA+4*b+2*h+1}")
        for pr in range(2):
            a(f"v_permlane16_swap_b32 v{80+4*pr}, v{82+4*pr}\nv_permlane16_swap_b32 v{81+4*pr}, v{83+4*pr}")
            a(f"buffer_store_dwordx4 {V(80+4*pr)}, v16, {S(sWS)}, s10 offen offset:{1024*pr}{self.sc}")

    def w_addr(self, pitch):
        a = self.a
        a(f"v_lshrrev_b32 v14, 3, v{vL}\nv_and_b32 v15, 7, v{vL}\nv_bfe_u32 v16, v{vL}, 4, 1\nv_lshlrev_b32 v16, 1, v16\nv_xor_b32 v15, v15, v16\nv_lshlrev_b32 v15, 4, v15")
        a(f"v_mul_u32_u24 v14, {pitch}, v14\nv_add_u32 v{vDE}, v14, v15\nv_xor_b32 v15, 64, v15\nv_add_u32 v{vDO}, v14, v15")
    def t_addr(self):
        a = self.a
        a(f"v_lshrrev_b32 v14, 4, v{vL}\nv_bfe_u32 v15, v{vL}, 2, 2\nv_and_b32 v16, 3, v{vL}\nv_lshlrev_b32 v17, 10, v14\nv_lshl_add_u32 v17, v15, 7, v17\nv_lshl_add_u32 v17, v16, 3, v17")
        a(f"s_lshl_b32 s8, s{sWV}, 14\ns_add_u32 s8, s8, {RING}\nv_add_u32 v17, s8, v17")
        a(f"v_lshrrev_b32 v15, 1, v15\nv_and_b32 v14, 1, v14\nv_lshl_add_u32 v14, v14, 1, v15")
        for jm in range(4): a(f"v_xor_b32 v15, {jm}, v14\nv_lshl_add_u32 v{vT+jm}, v15, 5, v17")
    def w_dma_step(self, srd, pitch, slot, fl=""):
        o = []
        for pc in range(4):
            o.append(f"s_add_u32 m0, s15, {slot*4096+pc*1024}")
            o.append(f"buffer_load_dwordx4 v{vDO if pc&1 else vDE}, {S(srd)}, s14 offen {fl} lds")
            o.append(f"s_add_u32 s14, s14, {8*pitch}")
        return o
    def w_tr_step(self, ks, slot):
        o = []
        for jm in range(4):
            for h in range(2):
                o.append(f"ds_read_b64_tr_b16 a[{16*ks+4*jm+2*h}:{16*ks+4*jm+2*h+1}], v{vT+jm} offset:{slot*4096+h*512}")
        return o
    def w_load_simple(self, srd, pitch, nsteps, rows_per_wave, scol, fl=""):
        a = self.a
        self.w_addr(pitch); self.t_addr()
        a(f"s_mul_i32 s14, s{sWV}, {rows_per_wave*pitch}\ns_lshl_b32 s15, s{scol}, 7\ns_add_u32 s14, s14, s15\ns_lshl_b32 s15, s{sWV}, 14\ns_add_u32 s15, s15, {RING}")
        for st in range(min(4, nsteps)):
            for x in self.w_dma_step(srd, pitch, st, fl): a(x)
        for st in range(nsteps):
            inflight = min(4, nsteps - st)
            a(f"s_waitcnt vmcnt({4*(inflight-1)})")
            for x in self.w_tr_step(st, st % 4): a(x)
            if st + 4 < nsteps:
                a("s_waitcnt lgkmcnt(0)")
                for x in self.w_dma_step(srd, pitch, st % 4, fl): a(x)
        a("s_waitcnt lgkmcnt(0)")

    def gemm(self, base_expr_emit, nsteps, w_is_A, depth=6, mid=None):
        a = self.a
        base_expr_emit()
        def loads(st):
            o = [f"buffer_load_dwordx4 {V(HR+16*(st%depth)+4*i)}, v{vL16}, {S(sWS)}, s16 offen offset:{1024*i}{self.sc}" for i in range(4)]
            o.append("s_add_u32 s16, s16, 4096"); return o
        for st in range(min(depth, nsteps)):
            for x in loads(st): a(x)
        for i in range(64): a(f"v_mov_b32 v{ACC+i}, 0")
        extra = 0
        for st in range(nsteps):
            infl = min(depth, nsteps - st)
            a(f"s_waitcnt vmcnt({4*(infl-1)})")
            for i in range(4):
                for j in range(4):
                    w = AR(16*st+4*j); h = V(HR+16*(st%depth)+4*i); c = V(ACC+16*j+4*i)
                    a(f"v_mfma_f32_16x16x32_bf16 {c}, {w if w_is_A else h}, {h if w_is_A else w}, {c}")
            if st + depth < nsteps:
                for x in loads(st + depth): a(x)
    def reduce4(self, xch):
        a = self.a
        labs = [self.lab() for _ in range(4)]; end = self.lab()
        a(f"v_add_u32 v14, {xch}, v{vL16}")
        for w in range(3): a(f"s_cmp_eq_u32 s{sWV}, {w}\ns_cbranch_scc1 {labs[w]}")
        for w in (3, 0, 1, 2):
            if w != 3: a(f"{labs[w]}:\ns_nop 7")
            for j in range(4):
                if j == w: continue
                k = w if w < j else w - 1
                for i in range(4): a(f"ds_write_b128 v14, {V(ACC+16*j+4*i)} offset:{(j*3+k)*4096+1024*i}")
            for i in range(8): a(f"v_pk_add_f32 v[{96+2*i}:{97+2*i}], v[{ACC+16*w+2*i}:{ACC+16*w+2*i+1}], 0 op_sel_hi:[1,0]")
            if w != 2: a(f"s_branch {end}")
        a(f"{end}:\ns_mul_i32 s8, s{sWV}, 12288\nv_add_u32 v14, s8, v14\ns_waitcnt lgkmcnt(0)\ns_barrier")
        for k in range(3):
            for i in range(4): a(f"ds_read_b128 {V(112+16*k+4*i)}, v14 offset:{k*4096+1024*i}")
        for k in range(3):
            a(f"s_waitcnt lgkmcnt({4*(2-k)})")
            for i in range(8): a(f"v_pk_add_f32 v[{96+2*i}:{97+2*i}], v[{96+2*i}:{97+2*i}], v[{112+16*k+2*i}:{113+16*k+2*i}]")
    def g1_bias_load(self):
        a = self.a
        a(f"v_lshrrev_b32 v19, 4, v{vL}\nv_lshlrev_b32 v19, 3, v19\ns_lshl_b32 s8, s{sFT}, 7\ns_lshl_b32 s9, s{sWV}, 5\ns_add_u32 s8, s8, s9\nbuffer_load_dwordx2 v[28:29], v19, {S(sB1)}, s8 offen")
    def g1_epilogue(self):
        a = self.a
        a("v_lshlrev_b32 v24, 16, v28\nv_and_b32 v25, 0xffff0000, v28\nv_lshlrev_b32 v26, 16, v29\nv_and_b32 v27, 0xffff0000, v29")
        c1 = -2.0 * 0.7978845608028654 * 1.4426950408889634
        import struct
        f2h = lambda x: "0x%08x" % struct.unpack("<I", struct.pack("<f", x))[0]
        a(f"v_mov_b32 v20, {f2h(c1)}\nv_mov_b32 v22, {f2h(c1*0.044715)}")
        p2 = lambda r: f"v[{r}:{r+1}]"
        for k in range(8): a(f"v_pk_add_f32 {p2(96+2*k)}, {p2(96+2*k)}, {p2(24+2*(k&1))}")
        for k in range(8): a(f"v_pk_mul_f32 {p2(112+2*k)}, {p2(96+2*k)}, {p2(96+2*k)}")
        for k in range(8): a(f"v_pk_fma_f32 {p2(112+2*k)}, {p2(112+2*k)}, {p2(22)}, {p2(20)} op_sel_hi:[1,0,0]")
        for k in range(8): a(f"v_pk_mul_f32 {p2(112+2*k)}, {p2(112+2*k)}, {p2(96+2*k)}")
        for k in range(16): a(f"v_exp_f32 v{112+k}, v{112+k}")
        for k in range(8): a(f"v_pk_add_f32 {p2(112+2*k)}, {p2(112+2*k)}, 1.0 op_sel_hi:[1,0]")
        for k in range(16): a(f"v_rcp_f32 v{112+k}, v{112+k}")
        for k in range(8): a(f"v_pk_mul_f32 {p2(96+2*k)}, {p2(96+2*k)}, {p2(112+2*k)}")
        for b in range(4):
            for h in range(2): a(f"v_cvt_pk_bf16_f32 v{128+4*(b>>1)+2*(b&1)+h}, v{96+4*b+2*h}, v{96+4*b+2*h+1}")
        a(f"v_bfe_u32 v16, v{vL}, 4, 1\nv_lshlrev_b32 v16, 10, v16\nv_and_b32 v17, 15, v{vL}\nv_lshl_add_u32 v16, v17, 4, v16\nv_lshrrev_b32 v17, 5, v{vL}\nv_lshl_add_u32 v16, v17, 8, v16")
        a(f"s_mul_i32 s8, s{sDT1}, 56\ns_lshl_b32 s9, s{sFT}, 1\ns_add_u32 s8, s8, s9\ns_lshl_b32 s8, s8, 12\ns_lshr_b32 s9, s{sWV}, 1\ns_lshl_b32 s9, s9, 12\ns_add_u32 s8, s8, s9")
        a(f"s_and_b32 s9, s{sWV}, 1\ns_lshl_b32 s9, s9, 9\ns_add_u32 s8, s8, s9\ns_add_u32 s8, s8, {UF}")
        for pr in range(2):
            a(f"v_permlane16_swap_b32 v{128+4*pr}, v{130+4*pr}\nv_permlane16_swap_b32 v{129+4*pr}, v{131+4*pr}")
            a(f"buffer_store_dwordx4 {V(128+4*pr)}, v16, {S(sWS)}, s8 offen offset:{2048*pr}{self.sc}")

    def sterm_load(self):
        a = self.a
        a(f"v_and_b32 v17, 15, v{vL}\nv_bfe_u32 v18, v{vL}, 4, 1\nv_lshrrev_b32 v19, 5, v{vL}\nv_lshlrev_b32 v18, 5, v18\nv_lshl_add_u32 v18, v19, 4, v18")
        a(f"v_mul_u32_u24 v19, 896, v17\nv_add_u32 v10, v19, v18")
        a(f"s_lshl_b32 s8, s{sST}, 6\ns_lshl_b32 s9, s{sWV}, 4\ns_add_u32 s8, s8, s9\ns_mul_i32 s17, s8, 896\ns_lshl_b32 s9, s{sDT2}, 7\ns_add_u32 s17, s17, s9")
        a(f"buffer_load_dwordx4 {V(192)}, v10, {S(sX)}, s17 offen\nbuffer_load_dwordx4 {V(196)}, v10, {S(sX)}, s17 offen offset:64")
        a(f"buffer_load_dwordx4 {V(200)}, v18, {S(sSSMD)}, s9 offen\nbuffer_load_dwordx4 {V(204)}, v18, {S(sSSMD)}, s9 offen offset:64")
        a(f"v_lshlrev_b32 v19, 3, v17\ns_lshl_b32 s9, s8, 3\ns_add_u32 s9, s9, {ST}\nbuffer_load_dwordx2 v[248:249], v19, {S(sWS)}, s9 offen{self.sc}")
        a(f"v_lshlrev_b32 v19, 1, v17\ns_lshl_b32 s9, s8, 1\nbuffer_load_ushort v29, v19, {S(sB2)}, s9 offen")
        a(f"v_lshrrev_b32 v19, 3, v0\nv_and_b32 v17, 7, v0\nv_lshlrev_b32 v17, 4, v17\nv_lshl_add_u32 v11, v19, 12, v17\nv_mul_u32_u24 v19, {TP}, v19\nv_add_u32 v9, v19, v17")
        a(f"s_lshl_b32 s8, s{sDT2}, 18\ns_lshl_b32 s9, s{sST}, 7\ns_add_u32 s8, s8, s9\ns_add_u32 s8, s8, {YT}\ns_add_u32 s9, s8, {32*4096}")
        a(f"buffer_load_dwordx4 {V(240)}, v11, {S(sWS)}, s8 offen{self.sc}\nbuffer_load_dwordx4 {V(244)}, v11, {S(sWS)}, s9 offen{self.sc}")
        return 8
    def sterm_compute(self):
        a = self.a
        p2 = lambda r: f"v[{r}:{r+1}]"
        a(f"ds_write_b128 v9, {V(240)} offset:{YS}\nds_write_b128 v9, {V(244)} offset:{YS+32*TP}")
        a(f"v_bfe_u32 v17, v{vL}, 4, 1\nv_lshrrev_b32 v19, 5, v{vL}\nv_lshlrev_b32 v17, 4, v17\nv_lshl_add_u32 v17, v19, 3, v17\nv_bfe_u32 v19, v{vL}, 2, 2\nv_add_u32 v17, v17, v19\nv_mul_u32_u24 v17, {TP}, v17")
        a(f"v_and_b32 v19, 3, v{vL}\nv_lshlrev_b32 v19, 3, v19\ns_lshl_b32 s8, s{sWV}, 5\nv_add3_u32 v17, v17, v19, s8")
        a(f"v_and_b32 v19, 15, v{vL}\nv_mul_u32_u24 v19, {TP}, v19\ns_mul_i32 s8, s{sWV}, {16*TP}\nv_add3_u32 v19, v19, v18, s8")
        a("s_waitcnt lgkmcnt(0)\ns_barrier")
        for pr in range(2):
            for h in range(2): a(f"ds_read_b64_tr_b16 v[{240+4*pr+2*h}:{241+4*pr+2*h}], v17 offset:{YS+(32*pr+4*h)*TP}")
            a(f"ds_read_b128 {V(20+4*pr)}, v19 offset:{KVS+64*pr}")
        def unp(d, s, n):
            for j in range(n): a(f"v_lshlrev_b32 v{d+2*j}, 16, v{s+j}\nv_and_b32 v{d+2*j+1}, 0xffff0000, v{s+j}")
        def rnd(d, t, n):
            for j in range(n): a(f"v_cvt_pk_bf16_f32 v{t+j}, v{d+2*j}, v{d+2*j+1}")
            unp(d, t, n)
        XF, SF = 224, 208
        unp(XF, 192, 8)
        for j in range(8): a(f"v_pk_add_f32 {p2(SF+2*j)}, {p2(XF+2*j)}, {p2(248)} op_sel_hi:[1,0] neg_lo:[0,1] neg_hi:[0,1]")
        rnd(SF, 192, 8)
        for j in range(8): a(f"v_pk_mul_f32 {p2(SF+2*j)}, {p2(SF+2*j)}, {p2(248)} op_sel:[0,1] op_sel_hi:[1,1]")
        rnd(SF, 192, 8)
        a("s_waitcnt lgkmcnt(0)")
        for pr in range(2):
            D0, K0 = 192, 250
            raw_d = 200 + 4 * pr
            for j in range(4):
                a(f"v_lshlrev_b32 v192, 16, v{raw_d+j}\nv_and_b32 v193, 0xffff0000, v{raw_d+j}")
                a(f"v_lshlrev_b32 v194, 16, v{20+4*pr+j}\nv_and_b32 v195, 0xffff0000, v{20+4*pr+j}")
                a(f"v_pk_mul_f32 {p2(192)}, {p2(192)}, {p2(194)}\nv_cvt_pk_bf16_f32 v196, v192, v193")
                a(f"v_lshlrev_b32 v192, 16, v196\nv_and_b32 v193, 0xffff0000, v196")
                a(f"v_lshlrev_b32 v194, 16, v{240+4*pr+j}\nv_and_b32 v195, 0xffff0000, v{240+4*pr+j}")
                a(f"v_pk_add_f32 {p2(192)}, {p2(192)}, {p2(194)}\nv_cvt_pk_bf16_f32 v196, v192, v193")
                a(f"v_lshlrev_b32 v192, 16, v196\nv_and_b32 v193, 0xffff0000, v196")
                o = SF + 8 * pr + 2 * j
                a(f"v_pk_mul_f32 {p2(o)}, {p2(o)}, {p2(192)}\nv_cvt_pk_bf16_f32 v196, v{o}, v{o+1}")
                a(f"v_lshlrev_b32 v{o}, 16, v196\nv_and_b32 v{o+1}, 0xffff0000, v196")
        a("v_lshlrev_b32 v28, 16, v29")
    def g2_epilogue(self):
        a = self.a
        p2 = lambda r: f"v[{r}:{r+1}]"
        XF, SF = 224, 208
        a("v_mov_b32 v20, 0xbfb8aa3b")
        for k in range(8): a(f"v_pk_add_f32 {p2(96+2*k)}, {p2(96+2*k)}, {p2(28)} op_sel_hi:[1,0]")
        for k in range(8): a(f"v_pk_mul_f32 {p2(112+2*k)}, {p2(96+2*k)}, {p2(20)} op_sel_hi:[1,0]")
        for k in range(16): a(f"v_exp_f32 v{112+k}, v{112+k}")
        for k in range(8): a(f"v_pk_add_f32 {p2(112+2*k)}, {p2(112+2*k)}, 1.0 op_sel_hi:[1,0]")
        for k in range(16): a(f"v_rcp_f32 v{112+k}, v{112+k}")
        for k in range(8): a(f"v_pk_mul_f32 {p2(96+2*k)}, {p2(96+2*k)}, {p2(112+2*k)}")
        for b in range(4):
            for h in range(2): a(f"v_cvt_pk_bf16_f32 v{128+4*(b>>1)+2*(b&1)+h}, v{96+4*b+2*h}, v{96+4*b+2*h+1}")
        for pr in range(2):
            a(f"v_permlane16_swap_b32 v{128+4*pr}, v{130+4*pr}\nv_permlane16_swap_b32 v{129+4*pr}, v{131+4*pr}")
        for j in range(8): a(f"v_lshlrev_b32 v{96+2*j}, 16, v{128+j}\nv_and_b32 v{97+2*j}, 0xffff0000, v{128+j}")
        for j in range(8): a(f"v_pk_mul_f32 {p2(96+2*j)}, {p2(96+2*j)}, {p2(SF+2*j)}")
        for j in range(8): a(f"v_cvt_pk_bf16_f32 v{128+j}, v{96+2*j}, v{97+2*j}")
        for j in range(8): a(f"v_lshlrev_b32 v{96+2*j}, 16, v{128+j}\nv_and_b32 v{97+2*j}, 0xffff0000, v{128+j}")
        for j in range(8): a(f"v_pk_add_f32 {p2(96+2*j)}, {p2(96+2*j)}, {p2(XF+2*j)}")
        for j in range(8): a(f"v_cvt_pk_bf16_f32 v{128+j}, v{96+2*j}, v{97+2*j}")
        for pr in range(2): a(f"buffer_store_dwordx4 {V(128+4*pr)}, v10, {S(sOUT)}, s17 offen offset:{64*pr}")

def finish(g):
    lines, n = hazard.fix(g.a.l)
    return "\n".join(lines) + "\n"

def kern(name, body):
    return f".globl {name}\n.p2align 8\n.type {name},@function\n{name}:\n" + body + "s_endpgm\n"

def gen_multi(opt):
    g = G(False, opt); g.n = 100; a = g.a
    g.setup(256, "K1end"); g.ln_load()
    l = g.lab()
    a(f"s_cmp_eq_u32 s{sHAS2}, 0\ns_cbranch_scc1 {l}")
    g.kv_load(); g.ln_compute(11); g.kv_compute(2); a("s_branch K1end")
    a(f"{l}:"); g.ln_compute(0); a("K1end:")
    k1 = finish(g)
    g = G(False, opt); g.n = 200; a = g.a
    g.setup(256, "K2end")
    l = g.lab()
    a(f"s_cmp_eq_u32 s{sHAS1}, 0\ns_cbranch_scc1 {l}")
    g.g1_bias_load()
    g.w_load_simple(sW1, 3584, 16, 512, sFT)
    g.gemm(lambda: a(f"s_lshl_b32 s16, s{sDT1}, 6\ns_lshl_b32 s8, s{sWV}, 4\ns_add_u32 s16, s16, s8\ns_lshl_b32 s16, s16, 12\ns_add_u32 s16, s16, {HF}"), 16, True)
    g.reduce4(XCH1); g.g1_epilogue(); a("s_barrier")
    a(f"{l}:\ns_cmp_eq_u32 s{sHAS2}, 0\ns_cbranch_scc1 K2end")
    g.kc_load(); g.ur_load(); a("s_waitcnt vmcnt(0)"); g.kc_fix(); g.ur_write(); g.conv()
    a("K2end:")
    k2 = finish(g)
    g = G(False, opt); g.n = 300; a = g.a
    g.setup(256, "K3end")
    a(f"s_cmp_eq_u32 s{sHAS2}, 0\ns_cbranch_scc1 K3end")
    g.kv_load(); g.kv_compute(0, store=False)
    g.sterm_load(); a("s_waitcnt vmcnt(0)"); g.sterm_compute()
    g.w_load_simple(sW2, 4096, 14, 448, sST)
    g.gemm(lambda: a(f"s_mul_i32 s16, s{sDT2}, 56\ns_mul_i32 s8, s{sWV}, 14\ns_add_u32 s16, s16, s8\ns_lshl_b32 s16, s16, 12\ns_add_u32 s16, s16, {UF}"), 14, False)
    a("s_barrier")
    g.reduce4(XCH2); g.g2_epilogue()
    a("K3end:")
    k3 = finish(g)
    names = ["prep_kernel", "g1_kernel", "g2_kernel"]
    hdr = "".join(f"; @launch kernel={n} grid=(256,1,1) block=(256,1,1) lds={LDS_SZ}\n" for n in names)
    txt = hdr + '.amdgcn_target "amdgcn-amd-amdhsa--gfx950"\n.text\n'
    for n, k in zip(names, (k1, k2, k3)): txt += kern(n, k)
    txt += '.section .rodata,"a"\n'
    for n in names: txt += ".p2align 6\n" + kernel_desc(n, 512, 102, 256)
    return txt

if __name__ == "__main__":
    open(sys.argv[1], "w").write(gen_multi({}))
```

```python
import sys
from asmlib import A, KN, kernel_desc
import hazard

HF, UF, KVT, YT, ST, FL = 0x0, 0x200000, 0x400000, 0x600000, 0x800000, 0x810000
WS_SZ = 0x1000000
FL_LN, FL_KV, FL_U, FL_Y, FL_EP = FL, FL + 0x400, FL + 0x800, FL + 0xC00, FL + 0x1000
STAMP = 0x900000
KC, KVS, UR, YS, HS, RING = 0, 33280, 42496, 51712, 60928, 91648
XCH1, XCH2, XCHC = 42496, 91648, 60928
CP = 4160; HSP = 1040; TP = 144
LDS_SZ = 157184
sX, sK, sV, sSHK, sSSMK, sSSMD, sW1, sB1, sW2, sB2, sOUT, sWS = [32 + 4 * i for i in range(12)]
sWV, sDT1, sFT, sDT2, sST, sTAG = 80, 81, 82, 83, 84, 85
sHAS1, sHAS2 = 86, 87
def S(b): return f"s[{b}:{b+3}]"
def V(b, n=4): return f"v[{b}:{b+n-1}]" if n > 1 else f"v{b}"
def AR(b, n=4): return f"a[{b}:{b+n-1}]"
vL, vL16 = 1, 2
vDE, vDO = 3, 4
vT = 5
ACC = 32; HR = 96

class G:
    def __init__(self, persist, opt=None):
        self.a = A(); self.persist = persist; self.n = 0; self.opt = opt or {}
        self.sc = " sc1" if persist else ""
    def lab(self, p="L"):
        self.n += 1; return f"{p}{self.n}"
    def stamp(self, idx):
        if not self.opt.get("stamps"): return
        self.a(f"s_memrealtime s[88:89]\ns_waitcnt lgkmcnt(0)\ns_mov_b32 s{18+idx}, s88")
    def stamp_flush(self, kidx=0):
        if not self.opt.get("stamps"): return
        a = self.a
        a("s_waitcnt vmcnt(0)"); self.stamp(13)
        for i in range(14): a(f"v_mov_b32 v{32+i}, s{18+i}")
        a(f"s_getreg_b32 s90, hwreg(HW_REG_XCC_ID)\nv_mov_b32 v46, s90\nv_mov_b32 v47, s91")
        a(f"s_lshl_b32 s90, s2, 2\ns_add_u32 s90, s90, s{sWV}\ns_lshl_b32 s90, s90, 6\ns_add_u32 s90, s90, {STAMP + kidx*0x10000}\nv_mov_b32 v31, 0")
        a("s_mov_b64 exec, 1")
        for i in range(4): a(f"buffer_store_dwordx4 {V(32+4*i)}, v31, {S(sWS)}, s90 offen offset:{16*i}")
        a("s_mov_b64 exec, -1")

    def setup(self, nwg, lend):
        a = self.a
        a(f"s_cmp_ge_u32 s2, {nwg}\ns_cbranch_scc1 {lend}")
        if self.opt.get("stamps"): a("s_memrealtime s[90:91]\ns_waitcnt lgkmcnt(0)\ns_mov_b32 s91, s90")
        a("s_load_dwordx16 s[4:19], s[0:1], 0\ns_load_dwordx8 s[20:27], s[0:1], 64\ns_load_dwordx4 s[28:31], s[0:1], 96")
        a(f"v_and_b32 v{vL}, 63, v0\nv_lshrrev_b32 v{vL16}, 6, v0\ns_nop 0\nv_readfirstlane_b32 s{sWV}, v{vL16}\nv_lshlrev_b32 v{vL16}, 4, v{vL}")
        mp = self.opt.get("map", "a1")
        a("s_and_b32 s94, s2, 7\ns_lshr_b32 s95, s2, 3")
        a("s_mul_i32 s96, s95, 37\ns_lshr_b32 s96, s96, 8\ns_mul_i32 s97, s96, 7\ns_sub_u32 s97, s95, s97")
        if mp == "a1":
            a(f"s_mov_b32 s{sDT1}, s97\ns_mov_b32 s{sDT2}, s97\ns_lshl_b32 s98, s96, 3\ns_add_u32 s{sFT}, s98, s94\ns_mov_b32 s{sST}, s{sFT}")
            a(f"s_cmp_lt_u32 s{sFT}, 28\ns_cselect_b32 s{sHAS1}, 1, 0\ns_cmp_lt_u32 s{sST}, 32\ns_cselect_b32 s{sHAS2}, 1, 0")
        elif mp == "a2":
            a("s_lshr_b32 s98, s94, 2\ns_and_b32 s99, s94, 3\ns_sub_u32 s100, 4, s98\ns_lshl_b32 s98, s98, 2")
            a(f"s_cmp_lt_u32 s96, s100\ns_cselect_b32 s{sHAS1}, 1, 0\ns_add_u32 s{sDT1}, s98, s96\ns_mul_i32 s{sFT}, s99, 7\ns_add_u32 s{sFT}, s{sFT}, s97")
            a(f"s_lshr_b32 s96, s95, 3\ns_and_b32 s97, s95, 7\ns_cmp_lt_u32 s96, s100\ns_cselect_b32 s{sHAS2}, 1, 0\ns_add_u32 s{sDT2}, s98, s96\ns_lshl_b32 s{sST}, s99, 3\ns_add_u32 s{sST}, s{sST}, s97")
        a("s_waitcnt lgkmcnt(0)")
        for d, b, n in ((sX, 4, 1835008), (sK, 6, 1835008), (sV, 8, 1835008), (sSHK, 10, 3584), (sSSMK, 12, 1835008), (sSSMD, 14, 896),
                        (sW1, 18, 7340032), (sB1, 20, 3584), (sW2, 22, 7340032), (sB2, 24, 4096), (sOUT, 26, 1835008), (sWS, 30, WS_SZ)):
            a(f"s_mov_b32 s{d}, s{b}\ns_and_b32 s{d+1}, s{b+1}, 0xffff\ns_mov_b32 s{d+2}, {n}\ns_mov_b32 s{d+3}, 0x20000")
        if self.opt.get("stamps"):
            for i in range(14): a(f"s_mov_b32 s{18+i}, 0")

    def ln_load(self):
        a = self.a
        a(f"v_cmp_gt_u32 vcc, 56, v{vL}\nv_mov_b32 v9, 0x80000000\nv_cndmask_b32 v9, v9, v{vL16}, vcc\nv_cndmask_b32 v10, 0, 1.0, vcc\nv_mov_b32 v11, 0x3b124925")
        a(f"s_lshl_b32 s4, s2, 3\ns_lshl_b32 s5, s{sWV}, 1\ns_add_u32 s4, s4, s5\ns_mul_i32 s5, s4, 896")
        fl = self.opt.get("xflags", "")
        a(f"buffer_load_dwordx4 {V(32)}, v9, {S(sX)}, s5 offen {fl}\nbuffer_load_dwordx4 {V(64)}, v9, {S(sX)}, s5 offen offset:896 {fl}")
    def ln_rowops(self, b, sr):
        X, F, Gd, T, M, RS, Vv, P = b, b + 4, b + 12, b + 20, b + 24, b + 26, b + 28, b + 29
        o = []
        def unpack(dst, src):
            for j in range(4):
                o.append(f"v_lshlrev_b32 v{dst+2*j}, 16, v{src+j}"); o.append(f"v_and_b32 v{dst+2*j+1}, 0xffff0000, v{src+j}")
        def red():
            for m in ("row_shr:1 row_mask:0xf", "row_shr:2 row_mask:0xf", "row_shr:4 row_mask:0xf", "row_shr:8 row_mask:0xf", "row_bcast:15 row_mask:0xa", "row_bcast:31 row_mask:0xc"):
                o.append(f"v_add_f32_dpp v{T}, v{T}, v{T} {m} bank_mask:0xf")
            o.append(f"v_readlane_b32 s{sr}, v{T}, 63")
        def p2(r): return f"v[{r}:{r+1}]"
        def norm(first, save):
            o.append(f"v_pk_add_f32 {p2(T)}, {p2(F)}, {p2(F+2)}"); o.append(f"v_pk_add_f32 {p2(T+2)}, {p2(F+4)}, {p2(F+6)}")
            o.append(f"v_pk_add_f32 {p2(T)}, {p2(T)}, {p2(T+2)}"); o.append(f"v_add_f32 v{T}, v{T}, v{T+1}")
            if not first: o.append(f"v_mul_f32 v{T}, v{T}, v10")
            red()
            o.append(f"v_mul_f32 v{M}, s{sr}, v11")
            for j in range(4): o.append(f"v_pk_add_f32 {p2(Gd+2*j)}, {p2(F+2*j)}, {p2(M)} op_sel_hi:[1,0] neg_lo:[0,1] neg_hi:[0,1]")
            o.append(f"v_pk_mul_f32 {p2(T)}, {p2(Gd)}, {p2(Gd)}")
            for j in range(1, 4): o.append(f"v_pk_fma_f32 {p2(T)}, {p2(Gd+2*j)}, {p2(Gd+2*j)}, {p2(T)}")
            o.append(f"v_add_f32 v{T}, v{T}, v{T+1}"); o.append(f"v_mul_f32 v{T}, v{T}, v10")
            red()
            o.append(f"v_mul_f32 v{Vv}, s{sr}, v11")
            o.append(f"v_cvt_pk_bf16_f32 v{P}, v{Vv}, v{M}")
            o.append(f"v_lshlrev_b32 v{Vv}, 16, v{P}"); o.append(f"v_and_b32 v{M}, 0xffff0000, v{P}")
            o.append(f"v_add_f32 v{Vv}, 0x3727c5ac, v{Vv}")
            o.append(f"v_cvt_pk_bf16_f32 v{P}, v{Vv}, v{Vv}"); o.append(f"v_lshlrev_b32 v{Vv}, 16, v{P}")
            o.append(f"v_sqrt_f32 v{Vv}, v{Vv}")
            o.append(f"v_cvt_pk_bf16_f32 v{P}, v{Vv}, v{Vv}"); o.append(f"v_lshlrev_b32 v{Vv}, 16, v{P}")
            o.append(f"v_rcp_f32 v{RS}, v{Vv}")
            for j in range(4): o.append(f"v_pk_add_f32 {p2(Gd+2*j)}, {p2(F+2*j)}, {p2(M)} op_sel_hi:[1,0] neg_lo:[0,1] neg_hi:[0,1]")
            for j in range(4): o.append(f"v_cvt_pk_bf16_f32 v{X+j}, v{Gd+2*j}, v{Gd+2*j+1}")
            unpack(F, X)
            for j in range(4): o.append(f"v_pk_mul_f32 {p2(F+2*j)}, {p2(F+2*j)}, {p2(RS)} op_sel_hi:[1,0]")
            for j in range(4): o.append(f"v_cvt_pk_bf16_f32 v{X+j}, v{F+2*j}, v{F+2*j+1}")
            if save:
                o.append(f"v_mov_b32 v{b+30}, v{M}"); o.append(f"v_mov_b32 v{b+31}, v{RS}")
        unpack(F, X); norm(True, True); unpack(F, X); norm(False, False)
        return o
    def ln_compute(self, vm_after):
        a = self.a
        a(f"s_waitcnt vmcnt({vm_after})")
        oa, ob = self.ln_rowops(32, 6), self.ln_rowops(64, 7)
        for x, y in zip(oa, ob): a(x); a(y)
        a(f"s_lshl_b32 s6, s{sWV}, 1\ns_mul_i32 s6, s6, {HSP}\ns_add_u32 s6, s6, {HS}\nv_add_u32 v12, s6, v{vL16}")
        a(f"ds_write_b128 v12, {V(32)}\nds_write_b128 v12, {V(64)} offset:{HSP}")
        a(f"s_lshl_b32 s6, s4, 3\ns_add_u32 s6, s6, {ST}\nv_mov_b32 v13, 0\nv_mov_b32 v60, v94\nv_mov_b32 v61, v95")
        a(f"v_mov_b32 v58, v62\nv_mov_b32 v59, v63")
        a(f"s_mov_b64 exec, 1\nbuffer_store_dwordx4 {V(58)}, v13, {S(sWS)}, s6 offen{self.sc}\ns_mov_b64 exec, -1")
        a(f"v_bfe_u32 v12, v{vL}, 2, 2\nv_mul_u32_u24 v12, {HSP}, v12\nv_lshrrev_b32 v13, 4, v{vL}\nv_lshlrev_b32 v14, 5, v13\nv_add_u32 v12, v12, v14")
        a(f"v_and_b32 v14, 3, v{vL}\nv_lshlrev_b32 v14, 3, v14\nv_add_u32 v12, v12, v14\ns_lshl_b32 s6, s{sWV}, 7\ns_add_u32 s6, s6, {HS}\nv_add_u32 v12, s6, v12")
        a(f"v_lshlrev_b32 v13, 10, v13\nv_and_b32 v14, 15, v{vL}\nv_lshlrev_b32 v14, 4, v14\nv_add_u32 v13, v13, v14")
        a(f"s_lshr_b32 s6, s2, 2\ns_lshl_b32 s7, s{sWV}, 6\ns_add_u32 s6, s6, s7\ns_lshl_b32 s6, s6, 12\ns_and_b32 s7, s2, 3\ns_lshl_b32 s7, s7, 8\ns_add_u32 s6, s6, s7")
        if HF: a(f"s_add_u32 s6, s6, {HF}")
        a(f"s_add_u32 s7, s6, {4*64*4096}")
        a("s_waitcnt lgkmcnt(0)\ns_barrier")
        a(f"ds_read_b64_tr_b16 v[36:37], v12\nds_read_b64_tr_b16 v[38:39], v12 offset:{4*HSP}")
        a(f"ds_read_b64_tr_b16 v[40:41], v12 offset:512\nds_read_b64_tr_b16 v[42:43], v12 offset:{4*HSP+512}")
        a(f"s_waitcnt lgkmcnt(2)\nbuffer_store_dwordx4 {V(36)}, v13, {S(sWS)}, s6 offen{self.sc}")
        l = self.lab()
        a(f"s_waitcnt lgkmcnt(0)\ns_cmp_eq_u32 s{sWV}, 3\ns_cbranch_scc1 {l}\nbuffer_store_dwordx4 {V(40)}, v13, {S(sWS)}, s7 offen{self.sc}\n{l}:")

    KR, VR, SKR = 96, 116, 124
    def kv_load(self):
        a = self.a
        a(f"v_and_b32 v14, 7, v0\nv_lshrrev_b32 v15, 3, v0\nv_lshlrev_b32 v16, 4, v14\nv_mul_u32_u24 v17, 1792, v15\nv_add_u32 v17, v17, v16")
        a(f"s_mul_i32 s8, s{sST}, {64*896}\ns_lshl_b32 s9, s{sDT2}, 7\ns_add_u32 s8, s8, s9\nv_add_u32 v17, s8, v17")
        fl = self.opt.get("kvflags", "")
        for j in range(5):
            if j < 3:
                a(f"v_subrev_u32 v18, {(3-j)*896}, v17\nbuffer_load_dwordx4 {V(self.KR+4*j)}, v18, {S(sK)}, 0 offen {fl}")
            else:
                a(f"buffer_load_dwordx4 {V(self.KR+4*j)}, v17, {S(sK)}, 0 offen offset:{(j-3)*896} {fl}")
        for j in range(2):
            a(f"buffer_load_dwordx4 {V(self.VR+4*j)}, v17, {S(sV)}, 0 offen offset:{j*896} {fl}")
        a(f"v_lshlrev_b32 v18, 6, v14\ns_lshl_b32 s9, s{sDT2}, 9")
        for j in range(4):
            a(f"buffer_load_dwordx4 {V(self.SKR+4*j)}, v18, {S(sSHK)}, s9 offen offset:{16*j}")
        return 11
    def kv_compute(self, vm_after, store=True):
        a = self.a
        KF, VF, SF, O = 140, 180, 196, 228
        p2 = lambda r: f"v[{r}:{r+1}]"
        a(f"s_waitcnt vmcnt({vm_after})")
        for j in range(20):
            a(f"v_lshlrev_b32 v{KF+2*j}, 16, v{self.KR+j}\nv_and_b32 v{KF+2*j+1}, 0xffff0000, v{self.KR+j}")
        for j in range(8):
            a(f"v_lshlrev_b32 v{VF+2*j}, 16, v{self.VR+j}\nv_and_b32 v{VF+2*j+1}, 0xffff0000, v{self.VR+j}")
        for e in range(8):
            a(f"v_lshlrev_b32 v{SF+e}, 16, v{self.SKR+2*e}\nv_and_b32 v{SF+8+e}, 0xffff0000, v{self.SKR+2*e}")
            a(f"v_lshlrev_b32 v{SF+16+e}, 16, v{self.SKR+2*e+1}\nv_and_b32 v{SF+24+e}, 0xffff0000, v{self.SKR+2*e+1}")
        for t in (3, 2, 1, 0):
            for r in range(2):
                for e in range(0, 8, 2):
                    k = KF + 8 * (r + 3 - t) + e; o = O + 8 * r + e
                    if t == 3: a(f"v_pk_mul_f32 {p2(o)}, {p2(k)}, {p2(SF+8*t+e)}")
                    else: a(f"v_pk_fma_f32 {p2(o)}, {p2(k)}, {p2(SF+8*t+e)}, {p2(o)}")
        for j in range(8): a(f"v_cvt_pk_bf16_f32 v{self.KR+j}, v{O+2*j}, v{O+2*j+1}")
        for j in range(8): a(f"v_lshlrev_b32 v{O+2*j}, 16, v{self.KR+j}\nv_and_b32 v{O+2*j+1}, 0xffff0000, v{self.KR+j}")
        for j in range(8): a(f"v_pk_mul_f32 {p2(O+2*j)}, {p2(O+2*j)}, {p2(VF+2*j)}")
        for j in range(8): a(f"v_cvt_pk_bf16_f32 v{self.KR+j}, v{O+2*j}, v{O+2*j+1}")
        a(f"v_and_b32 v14, 7, v0\nv_lshrrev_b32 v15, 3, v0\nv_mul_u32_u24 v16, {2*TP}, v15\nv_lshlrev_b32 v14, 4, v14\nv_add_u32 v16, v16, v14")
        a(f"ds_write_b128 v16, {V(self.KR)} offset:{KVS}\nds_write_b128 v16, {V(self.KR+4)} offset:{KVS+TP}")
        if not store:
            a("s_waitcnt lgkmcnt(0)\ns_barrier"); return
        a(f"v_lshrrev_b32 v14, 4, v{vL}\nv_bfe_u32 v15, v{vL}, 2, 2\nv_lshl_add_u32 v15, v14, 3, v15\nv_sub_u32 v15, 27, v15\nv_mul_u32_u24 v15, {TP}, v15")
        a(f"v_and_b32 v16, 3, v{vL}\nv_lshlrev_b32 v16, 3, v16\ns_lshl_b32 s8, s{sWV}, 5\nv_add3_u32 v15, v15, v16, s8")
        a(f"v_and_b32 v16, 15, v{vL}\nv_lshlrev_b32 v16, 12, v16\nv_lshl_add_u32 v16, v14, 4, v16")
        a(f"s_lshl_b32 s8, s{sDT2}, 2\ns_add_u32 s8, s8, s{sWV}\ns_lshl_b32 s8, s8, 16\ns_lshl_b32 s9, s{sST}, 7\ns_sub_u32 s8, s8, s9\ns_add_u32 s8, s8, {KVT + 3968}")
        a("s_waitcnt lgkmcnt(0)\ns_barrier")
        for j in range(2):
            for h in range(2):
                a(f"ds_read_b64_tr_b16 v[{140+4*j+2*h}:{141+4*j+2*h}], v15 offset:{KVS + (32*(1-j) + 4*(1-h))*TP}")
        a(f"s_waitcnt lgkmcnt(2)\nbuffer_store_dwordx4 {V(140)}, v16, {S(sWS)}, s8 offen{self.sc}")
        a(f"s_waitcnt lgkmcnt(0)\nbuffer_store_dwordx4 {V(144)}, v16, {S(sWS)}, s8 offen offset:64{self.sc}")

    def kc_load(self):
        a = self.a
        a(f"s_lshl_b32 s8, s{sDT2}, 5\ns_add_u32 s8, s8, s{sST}\ns_lshl_b32 s8, s8, 13")
        a(f"s_lshr_b32 s9, s{sWV}, 1\ns_and_b32 s10, s{sWV}, 1\ns_lshl_b32 s11, s9, 12\ns_add_u32 s11, s11, s8\ns_lshl_b32 s12, s10, 2\ns_add_u32 s11, s11, s12")
        a(f"s_mul_i32 s12, s{sWV}, {2*CP}\ns_add_u32 s12, s12, {KC+32}")
        fl = self.opt.get("kvflags", "")
        for p in range(2):
            if p: a(f"s_add_u32 s11, s11, 2\ns_add_u32 s12, s12, {CP}")
            a("s_mov_b32 m0, s12")
            for pc in range(4):
                a(f"buffer_load_dwordx4 v{vL16}, {S(sSSMK)}, s11 offen offset:{pc*1024} {fl} lds")
        a(f"v_bfe_u32 v19, v{vL}, 2, 1\nv_lshlrev_b32 v19, 12, v19\nbuffer_load_dwordx2 v[20:21], v19, {S(sSSMK)}, s8 offen")
        return 9
    def kc_fix(self):
        a = self.a
        a(f"v_and_b32 v19, 3, v{vL}\nv_lshlrev_b32 v22, 4, v19\nv_sub_u32 v22, 48, v22\nv_lshlrev_b64 v[26:27], v22, v[20:21]\nv_lshlrev_b64 v[26:27], 16, v[26:27]")
        a(f"v_mov_b32 v20, 0\nv_mov_b32 v21, 0\nv_mov_b32 v22, 0\nv_mov_b32 v23, 0\nv_mov_b32 v24, 0\nv_mov_b32 v25, 0")
        a(f"v_and_b32 v19, 7, v{vL}\nv_mul_u32_u24 v19, {CP}, v19")
        a(f"s_mov_b64 exec, 0xff\nds_write_b128 v19, v[20:23] offset:{KC}\nds_write_b128 v19, v[24:27] offset:{KC+16}\ns_mov_b64 exec, -1")
    def ur_load(self):
        a = self.a
        a(f"s_lshl_b32 s8, s{sDT2}, 5\ns_add_u32 s8, s8, s{sST}\ns_lshl_b32 s8, s8, 13\ns_lshl_b32 s9, s{sWV}, 11\ns_add_u32 s8, s8, s9\ns_add_u32 s8, s8, {KVT}")
        a(f"buffer_load_dwordx4 {V(240)}, v{vL16}, {S(sWS)}, s8 offen{self.sc}\nbuffer_load_dwordx4 {V(244)}, v{vL16}, {S(sWS)}, s8 offen offset:1024{self.sc}")
        return 2
    def ur_write(self):
        a = self.a
        a(f"s_lshr_b32 s8, s{sWV}, 1\ns_mul_i32 s8, s8, 4608\ns_and_b32 s9, s{sWV}, 1\ns_lshl_b32 s10, s9, 11\ns_add_u32 s10, s10, s8\nv_add_u32 v19, s10, v{vL16}")
        a(f"ds_write_b128 v19, {V(240)} offset:{UR}\nds_write_b128 v19, {V(244)} offset:{UR+1024}")
        a(f"s_lshl_b32 s9, s9, 8\ns_add_u32 s8, s8, s9\nv_add_u32 v19, s8, v{vL16}\nv_mov_b32 v20, 0\nv_mov_b32 v21, 0\nv_mov_b32 v22, 0\nv_mov_b32 v23, 0")
        a(f"s_mov_b64 exec, 0xffff\nds_write_b128 v19, v[20:23] offset:{UR+4096}\ns_mov_b64 exec, -1")
    def conv(self, filler=None):
        a = self.a
        CA, AS, BS = 32, 64, 128
        a(f"v_and_b32 v14, 15, v{vL}\nv_lshrrev_b32 v15, 4, v{vL}\nv_add_u32 v16, 1, v14\nv_and_b32 v17, 3, v16\nv_mul_u32_u24 v17, {CP}, v17\nv_and_b32 v16, 28, v16")
        a(f"v_lshl_add_u32 v16, v15, 3, v16\nv_lshl_add_u32 v12, v16, 1, v17")
        a(f"s_lshr_b32 s8, s{sWV}, 1\ns_and_b32 s9, s{sWV}, 1\ns_mul_i32 s10, s8, {4*CP}\ns_lshl_b32 s11, s9, 8\ns_add_u32 s10, s10, s11\ns_add_u32 s10, s10, {KC}\nv_add_u32 v12, s10, v12")
        a(f"v_lshlrev_b32 v16, 1, v14\nv_sub_u32 v16, v15, v16\nv_add_u32 v16, 30, v16\nv_lshlrev_b32 v13, 4, v16")
        a(f"s_mul_i32 s10, s8, 4608\ns_add_u32 s10, s10, s11\ns_add_u32 s10, s10, {UR}\nv_add_u32 v13, s10, v13")
        for i in range(32): a(f"v_mov_b32 v{CA+i}, 0")
        a("s_waitcnt lgkmcnt(0)\ns_barrier")
        def reads(r):
            s = r & 1; o = []
            for k in range(8):
                o.append(f"ds_read_b64 v[{AS+32*s+4*k}:{AS+32*s+4*k+1}], v12 offset:{64*(8*k+r)}")
                o.append(f"ds_read_b64 v[{AS+32*s+4*k+2}:{AS+32*s+4*k+3}], v12 offset:{64*(8*k+r)+8}")
                o.append(f"ds_read_b128 {V(BS+32*s+4*k)}, v13 offset:{(256*(7-k)+32*r)*2}")
            return o
        for x in reads(0): a(x)
        for r in range(4):
            s = r & 1
            nxt = reads(r + 1) if r < 3 else []
            a("s_waitcnt lgkmcnt(0)")
            mf = [(pp, q) for t in range(8) for pp in range(t + 1) for q in [t - pp]]
            mf.sort(key=lambda x: (x[0], x[1]))
            for k, (pp, q) in enumerate(mf):
                a(f"v_mfma_f32_16x16x32_bf16 {V(CA+4*(pp+q))}, {V(AS+32*s+4*pp)}, {V(BS+32*s+4*q)}, {V(CA+4*(pp+q))}")
                if k < len(nxt): a(nxt[k])
        a(f"s_lshl_b32 s10, s{sWV}, 12\ns_add_u32 s10, s10, {XCHC}\nv_add_u32 v14, s10, v{vL16}\ns_xor_b32 s10, s{sWV}, 1\ns_lshl_b32 s10, s10, 12\ns_add_u32 s10, s10, {XCHC}\nv_add_u32 v15, s10, v{vL16}")
        l1, l2 = self.lab(), self.lab()
        a(f"s_cmp_eq_u32 s9, 0\ns_cbranch_scc1 {l1}")
        for k in range(4): a(f"ds_write_b128 v14, {V(CA+4*k)} offset:{1024*k}")
        for k in range(16): a(f"v_mov_b32 v{CA+k}, v{CA+16+k}")
        a(f"s_branch {l2}\n{l1}:\ns_nop 7")
        for k in range(4): a(f"ds_write_b128 v14, {V(CA+16+4*k)} offset:{1024*k}")
        a(f"{l2}:\ns_waitcnt lgkmcnt(0)\ns_barrier")
        for k in range(4): a(f"ds_read_b128 {V(64+4*k)}, v15 offset:{1024*k}")
        a(f"v_bfe_u32 v16, v{vL}, 4, 1\nv_lshlrev_b32 v16, 9, v16\nv_and_b32 v17, 15, v{vL}\nv_lshl_add_u32 v16, v17, 5, v16\nv_lshrrev_b32 v17, 5, v{vL}\nv_lshl_add_u32 v16, v17, 4, v16")
        a(f"s_lshl_b32 s10, s{sDT2}, 5\ns_add_u32 s10, s10, s{sST}\ns_lshl_b32 s10, s10, 13\ns_lshl_b32 s11, s{sWV}, 11\ns_add_u32 s10, s10, s11\ns_add_u32 s10, s10, {YT}")
        a("s_waitcnt lgkmcnt(0)")
        for k in range(8): a(f"v_pk_add_f32 v[{CA+2*k}:{CA+2*k+1}], v[{CA+2*k}:{CA+2*k+1}], v[{64+2*k}:{64+2*k+1}]")
        for b in range(4):
            for h in range(2): a(f"v_cvt_pk_bf16_f32 v{80+4*(b>>1)+2*(b&1)+h}, v{CA+4*b+2*h}, v{CA+4*b+2*h+1}")
        for pr in range(2):
            a(f"v_permlane16_swap_b32 v{80+4*pr}, v{82+4*pr}\nv_permlane16_swap_b32 v{81+4*pr}, v{83+4*pr}")
            a(f"buffer_store_dwordx4 {V(80+4*pr)}, v16, {S(sWS)}, s10 offen offset:{1024*pr}{self.sc}")

    def w_addr(self, pitch):
        a = self.a
        a(f"v_lshrrev_b32 v14, 3, v{vL}\nv_and_b32 v15, 7, v{vL}\nv_bfe_u32 v16, v{vL}, 4, 1\nv_lshlrev_b32 v16, 1, v16\nv_xor_b32 v15, v15, v16\nv_lshlrev_b32 v15, 4, v15")
        a(f"v_mul_u32_u24 v14, {pitch}, v14\nv_add_u32 v{vDE}, v14, v15\nv_xor_b32 v15, 64, v15\nv_add_u32 v{vDO}, v14, v15")
    def t_addr(self):
        a = self.a
        a(f"v_lshrrev_b32 v14, 4, v{vL}\nv_bfe_u32 v15, v{vL}, 2, 2\nv_and_b32 v16, 3, v{vL}\nv_lshlrev_b32 v17, 10, v14\nv_lshl_add_u32 v17, v15, 7, v17\nv_lshl_add_u32 v17, v16, 3, v17")
        a(f"s_lshl_b32 s8, s{sWV}, 14\ns_add_u32 s8, s8, {RING}\nv_add_u32 v17, s8, v17")
        a(f"v_lshrrev_b32 v15, 1, v15\nv_and_b32 v14, 1, v14\nv_lshl_add_u32 v14, v14, 1, v15")
        for jm in range(4): a(f"v_xor_b32 v15, {jm}, v14\nv_lshl_add_u32 v{vT+jm}, v15, 5, v17")
    def w_dma_step(self, srd, pitch, slot, fl=""):
        o = []
        for pc in range(4):
            o.append(f"s_add_u32 m0, s15, {slot*4096+pc*1024}")
            o.append(f"buffer_load_dwordx4 v{vDO if pc&1 else vDE}, {S(srd)}, s14 offen {fl} lds")
            o.append(f"s_add_u32 s14, s14, {8*pitch}")
        return o
    def w_tr_step(self, ks, slot):
        o = []
        for jm in range(4):
            for h in range(2):
                o.append(f"ds_read_b64_tr_b16 a[{16*ks+4*jm+2*h}:{16*ks+4*jm+2*h+1}], v{vT+jm} offset:{slot*4096+h*512}")
        return o
    def w_load_simple(self, srd, pitch, nsteps, rows_per_wave, scol, fl=""):
        a = self.a
        self.w_addr(pitch); self.t_addr()
        a(f"s_mul_i32 s14, s{sWV}, {rows_per_wave*pitch}\ns_lshl_b32 s15, s{scol}, 7\ns_add_u32 s14, s14, s15\ns_lshl_b32 s15, s{sWV}, 14\ns_add_u32 s15, s15, {RING}")
        for st in range(min(4, nsteps)):
            for x in self.w_dma_step(srd, pitch, st, fl): a(x)
        for st in range(nsteps):
            inflight = min(4, nsteps - st)
            a(f"s_waitcnt vmcnt({4*(inflight-1)})")
            for x in self.w_tr_step(st, st % 4): a(x)
            if st + 4 < nsteps:
                a("s_waitcnt lgkmcnt(0)")
                for x in self.w_dma_step(srd, pitch, st % 4, fl): a(x)
        a("s_waitcnt lgkmcnt(0)")

    def gemm(self, base_expr_emit, nsteps, w_is_A, depth=6, mid=None):
        a = self.a
        base_expr_emit()
        def loads(st):
            o = [f"buffer_load_dwordx4 {V(HR+16*(st%depth)+4*i)}, v{vL16}, {S(sWS)}, s16 offen offset:{1024*i}{self.sc}" for i in range(4)]
            o.append("s_add_u32 s16, s16, 4096"); return o
        for st in range(min(depth, nsteps)):
            for x in loads(st): a(x)
        for i in range(64): a(f"v_mov_b32 v{ACC+i}, 0")
        extra = 0
        for st in range(nsteps):
            infl = min(depth, nsteps - st)
            a(f"s_waitcnt vmcnt({4*(infl-1)})")
            for i in range(4):
                for j in range(4):
                    w = AR(16*st+4*j); h = V(HR+16*(st%depth)+4*i); c = V(ACC+16*j+4*i)
                    a(f"v_mfma_f32_16x16x32_bf16 {c}, {w if w_is_A else h}, {h if w_is_A else w}, {c}")
            if st + depth < nsteps:
                for x in loads(st + depth): a(x)
    def reduce4(self, xch):
        a = self.a
        labs = [self.lab() for _ in range(4)]; end = self.lab()
        a(f"v_add_u32 v14, {xch}, v{vL16}")
        for w in range(3): a(f"s_cmp_eq_u32 s{sWV}, {w}\ns_cbranch_scc1 {labs[w]}")
        for w in (3, 0, 1, 2):
            if w != 3: a(f"{labs[w]}:\ns_nop 7")
            for j in range(4):
                if j == w: continue
                k = w if w < j else w - 1
                for i in range(4): a(f"ds_write_b128 v14, {V(ACC+16*j+4*i)} offset:{(j*3+k)*4096+1024*i}")
            for i in range(8): a(f"v_pk_add_f32 v[{96+2*i}:{97+2*i}], v[{ACC+16*w+2*i}:{ACC+16*w+2*i+1}], 0 op_sel_hi:[1,0]")
            if w != 2: a(f"s_branch {end}")
        a(f"{end}:\ns_mul_i32 s8, s{sWV}, 12288\nv_add_u32 v14, s8, v14\ns_waitcnt lgkmcnt(0)\ns_barrier")
        for k in range(3):
            for i in range(4): a(f"ds_read_b128 {V(112+16*k+4*i)}, v14 offset:{k*4096+1024*i}")
        for k in range(3):
            a(f"s_waitcnt lgkmcnt({4*(2-k)})")
            for i in range(8): a(f"v_pk_add_f32 v[{96+2*i}:{97+2*i}], v[{96+2*i}:{97+2*i}], v[{112+16*k+2*i}:{113+16*k+2*i}]")
    def g1_bias_load(self):
        a = self.a
        a(f"v_lshrrev_b32 v19, 4, v{vL}\nv_lshlrev_b32 v19, 3, v19\ns_lshl_b32 s8, s{sFT}, 7\ns_lshl_b32 s9, s{sWV}, 5\ns_add_u32 s8, s8, s9\nbuffer_load_dwordx2 v[28:29], v19, {S(sB1)}, s8 offen")
    def g1_epilogue(self):
        a = self.a
        a("v_lshlrev_b32 v24, 16, v28\nv_and_b32 v25, 0xffff0000, v28\nv_lshlrev_b32 v26, 16, v29\nv_and_b32 v27, 0xffff0000, v29")
        c1 = -2.0 * 0.7978845608028654 * 1.4426950408889634
        import struct
        f2h = lambda x: "0x%08x" % struct.unpack("<I", struct.pack("<f", x))[0]
        a(f"v_mov_b32 v20, {f2h(c1)}\nv_mov_b32 v22, {f2h(c1*0.044715)}")
        p2 = lambda r: f"v[{r}:{r+1}]"
        for k in range(8): a(f"v_pk_add_f32 {p2(96+2*k)}, {p2(96+2*k)}, {p2(24+2*(k&1))}")
        for k in range(8): a(f"v_pk_mul_f32 {p2(112+2*k)}, {p2(96+2*k)}, {p2(96+2*k)}")
        for k in range(8): a(f"v_pk_fma_f32 {p2(112+2*k)}, {p2(112+2*k)}, {p2(22)}, {p2(20)} op_sel_hi:[1,0,0]")
        for k in range(8): a(f"v_pk_mul_f32 {p2(112+2*k)}, {p2(112+2*k)}, {p2(96+2*k)}")
        for k in range(16): a(f"v_exp_f32 v{112+k}, v{112+k}")
        for k in range(8): a(f"v_pk_add_f32 {p2(112+2*k)}, {p2(112+2*k)}, 1.0 op_sel_hi:[1,0]")
        for k in range(16): a(f"v_rcp_f32 v{112+k}, v{112+k}")
        for k in range(8): a(f"v_pk_mul_f32 {p2(96+2*k)}, {p2(96+2*k)}, {p2(112+2*k)}")
        for b in range(4):
            for h in range(2): a(f"v_cvt_pk_bf16_f32 v{128+4*(b>>1)+2*(b&1)+h}, v{96+4*b+2*h}, v{96+4*b+2*h+1}")
        a(f"v_bfe_u32 v16, v{vL}, 4, 1\nv_lshlrev_b32 v16, 10, v16\nv_and_b32 v17, 15, v{vL}\nv_lshl_add_u32 v16, v17, 4, v16\nv_lshrrev_b32 v17, 5, v{vL}\nv_lshl_add_u32 v16, v17, 8, v16")
        a(f"s_mul_i32 s8, s{sDT1}, 56\ns_lshl_b32 s9, s{sFT}, 1\ns_add_u32 s8, s8, s9\ns_lshl_b32 s8, s8, 12\ns_lshr_b32 s9, s{sWV}, 1\ns_lshl_b32 s9, s9, 12\ns_add_u32 s8, s8, s9")
        a(f"s_and_b32 s9, s{sWV}, 1\ns_lshl_b32 s9, s9, 9\ns_add_u32 s8, s8, s9\ns_add_u32 s8, s8, {UF}")
        for pr in range(2):
            a(f"v_permlane16_swap_b32 v{128+4*pr}, v{130+4*pr}\nv_permlane16_swap_b32 v{129+4*pr}, v{131+4*pr}")
            a(f"buffer_store_dwordx4 {V(128+4*pr)}, v16, {S(sWS)}, s8 offen offset:{2048*pr}{self.sc}")

    def sterm_load(self):
        a = self.a
        a(f"v_and_b32 v17, 15, v{vL}\nv_bfe_u32 v18, v{vL}, 4, 1\nv_lshrrev_b32 v19, 5, v{vL}\nv_lshlrev_b32 v18, 5, v18\nv_lshl_add_u32 v18, v19, 4, v18")
        a(f"v_mul_u32_u24 v19, 896, v17\nv_add_u32 v10, v19, v18")
        a(f"s_lshl_b32 s8, s{sST}, 6\ns_lshl_b32 s9, s{sWV}, 4\ns_add_u32 s8, s8, s9\ns_mul_i32 s17, s8, 896\ns_lshl_b32 s9, s{sDT2}, 7\ns_add_u32 s17, s17, s9")
        a(f"buffer_load_dwordx4 {V(192)}, v10, {S(sX)}, s17 offen\nbuffer_load_dwordx4 {V(196)}, v10, {S(sX)}, s17 offen offset:64")
        a(f"buffer_load_dwordx4 {V(200)}, v18, {S(sSSMD)}, s9 offen\nbuffer_load_dwordx4 {V(204)}, v18, {S(sSSMD)}, s9 offen offset:64")
        a(f"v_lshlrev_b32 v19, 3, v17\ns_lshl_b32 s9, s8, 3\ns_add_u32 s9, s9, {ST}\nbuffer_load_dwordx2 v[248:249], v19, {S(sWS)}, s9 offen{self.sc}")
        a(f"v_lshlrev_b32 v19, 1, v17\ns_lshl_b32 s9, s8, 1\nbuffer_load_ushort v29, v19, {S(sB2)}, s9 offen")
        a(f"v_lshrrev_b32 v19, 3, v0\nv_and_b32 v17, 7, v0\nv_lshlrev_b32 v17, 4, v17\nv_lshl_add_u32 v11, v19, 12, v17\nv_mul_u32_u24 v19, {TP}, v19\nv_add_u32 v9, v19, v17")
        a(f"s_lshl_b32 s8, s{sDT2}, 18\ns_lshl_b32 s9, s{sST}, 7\ns_add_u32 s8, s8, s9\ns_add_u32 s8, s8, {YT}\ns_add_u32 s9, s8, {32*4096}")
        a(f"buffer_load_dwordx4 {V(240)}, v11, {S(sWS)}, s8 offen{self.sc}\nbuffer_load_dwordx4 {V(244)}, v11, {S(sWS)}, s9 offen{self.sc}")
        return 8
    def sterm_compute(self):
        a = self.a
        p2 = lambda r: f"v[{r}:{r+1}]"
        a(f"ds_write_b128 v9, {V(240)} offset:{YS}\nds_write_b128 v9, {V(244)} offset:{YS+32*TP}")
        a(f"v_bfe_u32 v17, v{vL}, 4, 1\nv_lshrrev_b32 v19, 5, v{vL}\nv_lshlrev_b32 v17, 4, v17\nv_lshl_add_u32 v17, v19, 3, v17\nv_bfe_u32 v19, v{vL}, 2, 2\nv_add_u32 v17, v17, v19\nv_mul_u32_u24 v17, {TP}, v17")
        a(f"v_and_b32 v19, 3, v{vL}\nv_lshlrev_b32 v19, 3, v19\ns_lshl_b32 s8, s{sWV}, 5\nv_add3_u32 v17, v17, v19, s8")
        a(f"v_and_b32 v19, 15, v{vL}\nv_mul_u32_u24 v19, {TP}, v19\ns_mul_i32 s8, s{sWV}, {16*TP}\nv_add3_u32 v19, v19, v18, s8")
        a("s_waitcnt lgkmcnt(0)\ns_barrier")
        for pr in range(2):
            for h in range(2): a(f"ds_read_b64_tr_b16 v[{240+4*pr+2*h}:{241+4*pr+2*h}], v17 offset:{YS+(32*pr+4*h)*TP}")
            a(f"ds_read_b128 {V(20+4*pr)}, v19 offset:{KVS+64*pr}")
        def unp(d, s, n):
            for j in range(n): a(f"v_lshlrev_b32 v{d+2*j}, 16, v{s+j}\nv_and_b32 v{d+2*j+1}, 0xffff0000, v{s+j}")
        def rnd(d, t, n):
            for j in range(n): a(f"v_cvt_pk_bf16_f32 v{t+j}, v{d+2*j}, v{d+2*j+1}")
            unp(d, t, n)
        XF, SF = 224, 208
        unp(XF, 192, 8)
        for j in range(8): a(f"v_pk_add_f32 {p2(SF+2*j)}, {p2(XF+2*j)}, {p2(248)} op_sel_hi:[1,0] neg_lo:[0,1] neg_hi:[0,1]")
        rnd(SF, 192, 8)
        for j in range(8): a(f"v_pk_mul_f32 {p2(SF+2*j)}, {p2(SF+2*j)}, {p2(248)} op_sel:[0,1] op_sel_hi:[1,1]")
        rnd(SF, 192, 8)
        a("s_waitcnt lgkmcnt(0)")
        for pr in range(2):
            D0, K0 = 192, 250
            raw_d = 200 + 4 * pr
            for j in range(4):
                a(f"v_lshlrev_b32 v192, 16, v{raw_d+j}\nv_and_b32 v193, 0xffff0000, v{raw_d+j}")
                a(f"v_lshlrev_b32 v194, 16, v{20+4*pr+j}\nv_and_b32 v195, 0xffff0000, v{20+4*pr+j}")
                a(f"v_pk_mul_f32 {p2(192)}, {p2(192)}, {p2(194)}\nv_cvt_pk_bf16_f32 v196, v192, v193")
                a(f"v_lshlrev_b32 v192, 16, v196\nv_and_b32 v193, 0xffff0000, v196")
                a(f"v_lshlrev_b32 v194, 16, v{240+4*pr+j}\nv_and_b32 v195, 0xffff0000, v{240+4*pr+j}")
                a(f"v_pk_add_f32 {p2(192)}, {p2(192)}, {p2(194)}\nv_cvt_pk_bf16_f32 v196, v192, v193")
                a(f"v_lshlrev_b32 v192, 16, v196\nv_and_b32 v193, 0xffff0000, v196")
                o = SF + 8 * pr + 2 * j
                a(f"v_pk_mul_f32 {p2(o)}, {p2(o)}, {p2(192)}\nv_cvt_pk_bf16_f32 v196, v{o}, v{o+1}")
                a(f"v_lshlrev_b32 v{o}, 16, v196\nv_and_b32 v{o+1}, 0xffff0000, v196")
        a("v_lshlrev_b32 v28, 16, v29")
    def g2_epilogue(self):
        a = self.a
        p2 = lambda r: f"v[{r}:{r+1}]"
        XF, SF = 224, 208
        a("v_mov_b32 v20, 0xbfb8aa3b")
        for k in range(8): a(f"v_pk_add_f32 {p2(96+2*k)}, {p2(96+2*k)}, {p2(28)} op_sel_hi:[1,0]")
        for k in range(8): a(f"v_pk_mul_f32 {p2(112+2*k)}, {p2(96+2*k)}, {p2(20)} op_sel_hi:[1,0]")
        for k in range(16): a(f"v_exp_f32 v{112+k}, v{112+k}")
        for k in range(8): a(f"v_pk_add_f32 {p2(112+2*k)}, {p2(112+2*k)}, 1.0 op_sel_hi:[1,0]")
        for k in range(16): a(f"v_rcp_f32 v{112+k}, v{112+k}")
        for k in range(8): a(f"v_pk_mul_f32 {p2(96+2*k)}, {p2(96+2*k)}, {p2(112+2*k)}")
        for b in range(4):
            for h in range(2): a(f"v_cvt_pk_bf16_f32 v{128+4*(b>>1)+2*(b&1)+h}, v{96+4*b+2*h}, v{96+4*b+2*h+1}")
        for pr in range(2):
            a(f"v_permlane16_swap_b32 v{128+4*pr}, v{130+4*pr}\nv_permlane16_swap_b32 v{129+4*pr}, v{131+4*pr}")
        for j in range(8): a(f"v_lshlrev_b32 v{96+2*j}, 16, v{128+j}\nv_and_b32 v{97+2*j}, 0xffff0000, v{128+j}")
        for j in range(8): a(f"v_pk_mul_f32 {p2(96+2*j)}, {p2(96+2*j)}, {p2(SF+2*j)}")
        for j in range(8): a(f"v_cvt_pk_bf16_f32 v{128+j}, v{96+2*j}, v{97+2*j}")
        for j in range(8): a(f"v_lshlrev_b32 v{96+2*j}, 16, v{128+j}\nv_and_b32 v{97+2*j}, 0xffff0000, v{128+j}")
        for j in range(8): a(f"v_pk_add_f32 {p2(96+2*j)}, {p2(96+2*j)}, {p2(XF+2*j)}")
        for j in range(8): a(f"v_cvt_pk_bf16_f32 v{128+j}, v{96+2*j}, v{97+2*j}")
        for pr in range(2): a(f"buffer_store_dwordx4 {V(128+4*pr)}, v10, {S(sOUT)}, s17 offen offset:{64*pr}")

def finish(g):
    lines, n = hazard.fix(g.a.l)
    return "\n".join(lines) + "\n"

def kern(name, body):
    return f".globl {name}\n.p2align 8\n.type {name},@function\n{name}:\n" + body + "s_endpgm\n"

def gen_multi(opt):
    g = G(False, opt); g.n = 100; a = g.a
    g.setup(256, "K1end"); g.stamp(0); g.ln_load()
    l = g.lab()
    a(f"s_cmp_eq_u32 s{sHAS2}, 0\ns_cbranch_scc1 {l}")
    g.kv_load(); g.ln_compute(11); g.stamp(1); g.kv_compute(2); g.stamp(2); a("s_branch K1f")
    a(f"{l}:"); g.ln_compute(0); a("K1f:"); g.stamp_flush(0); a("K1end:")
    k1 = finish(g)
    g = G(False, opt); g.n = 200; a = g.a
    g.setup(256, "K2end"); g.stamp(0)
    l = g.lab()
    a(f"s_cmp_eq_u32 s{sHAS1}, 0\ns_cbranch_scc1 {l}")
    g.g1_bias_load()
    g.w_load_simple(sW1, 3584, 16, 512, sFT, opt.get("wflags","")); g.stamp(1)
    g.gemm(lambda: a(f"s_lshl_b32 s16, s{sDT1}, 6\ns_lshl_b32 s8, s{sWV}, 4\ns_add_u32 s16, s16, s8\ns_lshl_b32 s16, s16, 12\ns_add_u32 s16, s16, {HF}"), 16, True)
    g.stamp(2)
    g.reduce4(XCH1); g.stamp(3); g.g1_epilogue(); a("s_barrier"); g.stamp(4)
    a(f"{l}:\ns_cmp_eq_u32 s{sHAS2}, 0\ns_cbranch_scc1 K2f")
    g.kc_load(); g.ur_load(); a("s_waitcnt vmcnt(0)"); g.stamp(5); g.kc_fix(); g.ur_write(); g.conv(); g.stamp(6)
    a("K2f:"); g.stamp_flush(1); a("K2end:")
    k2 = finish(g)
    g = G(False, opt); g.n = 300; a = g.a
    g.setup(256, "K3end"); g.stamp(0)
    a(f"s_cmp_eq_u32 s{sHAS2}, 0\ns_cbranch_scc1 K3f")
    g.kv_load(); g.kv_compute(0, store=False); g.stamp(1)
    g.sterm_load(); a("s_waitcnt vmcnt(0)"); g.sterm_compute(); g.stamp(2)
    g.w_load_simple(sW2, 4096, 14, 448, sST, opt.get("wflags","")); g.stamp(3)
    g.gemm(lambda: a(f"s_mul_i32 s16, s{sDT2}, 56\ns_mul_i32 s8, s{sWV}, 14\ns_add_u32 s16, s16, s8\ns_lshl_b32 s16, s16, 12\ns_add_u32 s16, s16, {UF}"), 14, False)
    g.stamp(4)
    a("s_barrier")
    g.reduce4(XCH2); g.stamp(5); g.g2_epilogue(); g.stamp(6)
    a("K3f:"); g.stamp_flush(2); a("K3end:")
    k3 = finish(g)
    names = ["prep_kernel", "g1_kernel", "g2_kernel"]
    hdr = "".join(f"; @launch kernel={n} grid=(256,1,1) block=(256,1,1) lds={LDS_SZ}\n" for n in names)
    txt = hdr + '.amdgcn_target "amdgcn-amd-amdhsa--gfx950"\n.text\n'
    for n, k in zip(names, (k1, k2, k3)): txt += kern(n, k)
    txt += '.section .rodata,"a"\n'
    for n in names: txt += ".p2align 6\n" + kernel_desc(n, 512, 102, 256)
    return txt

if __name__ == "__main__":
    opt = dict(kv.split("=") for kv in sys.argv[2:])
    open(sys.argv[1], "w").write(gen_multi(opt))
```

```python
import sys
from asmlib import *
import gen as GG
def probe(src, kA, iA, kB, iB, mult=10, mode="avg", stride=16):
    a = A()
    a("s_cmp_ge_u32 s2, 1\ns_cbranch_scc1 Pend\ns_load_dwordx2 s[6:7], s[0:1], 104\ns_waitcnt lgkmcnt(0)")
    srd(a, 8, 6, GG.WS_SZ)
    a(f"v_mul_u32_u24 v1, {stride*64}, v0")
    a(f"s_mov_b32 s12, {GG.STAMP + kA*0x10000 + iA*4}\ns_mov_b32 s13, {GG.STAMP + kB*0x10000 + iB*4}")
    a("buffer_load_dword v2, v1, s[8:11], s12 offen\nbuffer_load_dword v3, v1, s[8:11], s13 offen\ns_waitcnt vmcnt(0)")
    if mode == "xcc":
        a(f"v_mul_u32_u24 v4, {stride//4}, v0\nv_sub_u32 v4, v3, v4\nv_and_b32 v4, 7, v4\ns_nop 1\nv_readfirstlane_b32 s14, v4\ns_nop 3\nv_cmp_ne_u32 vcc, s14, v4\ns_nop 3\ns_bcnt1_i32_b64 s15, vcc\ns_mul_i32 s15, s15, 100")
    else:
        a("v_sub_u32 v4, v3, v2\nv_cmp_ne_u32 vcc, 0, v3\ns_nop 1\nv_cndmask_b32 v4, 0, v4, vcc\ns_nop 3\ns_bcnt1_i32_b64 s16, vcc")
        op = "v_add_u32_dpp" if mode == "avg" else "v_max_u32_dpp"
        for m in ("row_shr:1 row_mask:0xf", "row_shr:2 row_mask:0xf", "row_shr:4 row_mask:0xf", "row_shr:8 row_mask:0xf", "row_bcast:15 row_mask:0xa", "row_bcast:31 row_mask:0xc"):
            a(f"s_nop 1\n{op} v4, v4, v4 {m} bank_mask:0xf")
        a("s_nop 1\nv_cvt_f32_u32 v4, v4")
        if mode == "avg": a("v_cvt_f32_u32 v5, s16\nv_rcp_f32 v5, v5\ns_nop 1\nv_mul_f32 v4, v4, v5")
        a(f"v_mul_f32 v4, {float(mult)}, v4\nv_cvt_u32_f32 v4, v4\ns_nop 1\nv_readlane_b32 s15, v4, 63\ns_nop 3\ns_min_u32 s15, s15, 50000")
    a("s_memrealtime s[4:5]\ns_waitcnt lgkmcnt(0)\ns_add_u32 s6, s4, s15\nPL0:\ns_memrealtime s[18:19]\ns_waitcnt lgkmcnt(0)\ns_sub_u32 s20, s18, s6\ns_cmp_lt_i32 s20, 0\ns_cbranch_scc1 PL0\nPend:")
    s = open(src).read()
    hdr, rest = s.split('.amdgcn_target', 1)
    if "kernel=" not in hdr:
        hdr = hdr.replace("@launch grid", f"@launch kernel={KN}_kernel grid")
    hdr += '; @launch kernel=probe_kernel grid=(1,1,1) block=(64,1,1) lds=0\n'
    rest = rest.replace('.section .rodata', '.globl probe_kernel\n.p2align 8\n.type probe_kernel,@function\nprobe_kernel:\n' + a.text() + 's_endpgm\n.section .rodata', 1)
    rest += '.p2align 6\n' + kernel_desc('probe_kernel', 16, 32, 16)
    return hdr + '.amdgcn_target' + rest
if __name__ == "__main__":
    src = sys.argv[1]
    for i, spec in enumerate(sys.argv[2:]):
        f = spec.split(",")
        open(f"p{i}.s", "w").write(probe(src, int(f[0]), int(f[1]), int(f[2]), int(f[3]), mode=f[4], stride=int(f[5]) if len(f) > 5 else 16))
```

```python
import sys, struct
from asmlib import A, KN, kernel_desc
import hazard

HF, UF, KVT, YT, ST, FL = 0x0, 0x200000, 0x400000, 0x600000, 0x800000, 0x810000
WS_SZ = 0x1000000
FL_LN, FL_KV, FL_U, FL_Y, FL_EP = FL, FL + 0x10000, FL + 0x20000, FL + 0x30000, FL + 0x40000
STAMP = 0x900000
OOB = 0x40000000
KC, UR, YS, HS, RING = 0, 33280, 42496, 33280, 51712
XCHC = 0
CP = 4160; HSP = 1040; TP = 144
RSLOTS = 6
KVS = RING
XIN = RING + 3 * 4096
LDS_SZ = RING + 4 * RSLOTS * 4096
sX, sK, sV, sSHK, sSSMK, sSSMD, sW1, sB1, sW2, sB2, sOUT, sWS = [32 + 4 * i for i in range(12)]
sWV, sDT1, sFT, sDT2, sST, sTAG, sHAS1, sHAS2 = 80, 81, 82, 83, 84, 85, 86, 87
sWK, sWB, sWR, sWO = 94, 95, 96, 97
sHI, sKD, sKS = 98, 99, 100
def S(b): return f"s[{b}:{b+3}]"
def V(b, n=4): return f"v[{b}:{b+n-1}]" if n > 1 else f"v{b}"
def P2(r): return f"v[{r}:{r+1}]"
def AR(b, n=4): return f"a[{b}:{b+n-1}]"
def f2h(x): return "0x%08x" % struct.unpack("<I", struct.pack("<f", x))[0]
vL, vL16, vDE, vDO, vT = 1, 2, 3, 4, 5
ACC, HR = 32, 96

class AQ(A):
    def __init__(self): super().__init__(); self.vm = 0
    def __call__(self, s):
        if isinstance(s, (list, tuple)):
            for x in s: self(x)
            return
        if callable(s): s(); return
        for line in s.split("\n"):
            if line.strip().startswith(("buffer_", "global_")): self.vm += 1
        super().__call__(s)
    def mark(self): return self.vm
    def wait(self, mark):
        n = self.vm - mark
        assert 0 <= n <= 63, n
        self(f"s_waitcnt vmcnt({n})")

def unp(d, s, n):
    o = []
    for j in range(n): o += [f"v_lshlrev_b32 v{d+2*j}, 16, v{s+j}", f"v_and_b32 v{d+2*j+1}, 0xffff0000, v{s+j}"]
    return o
def pack(t, d, n): return [f"v_cvt_pk_bf16_f32 v{t+j}, v{d+2*j}, v{d+2*j+1}" for j in range(n)]
def rnd(d, t, n): return pack(t, d, n) + unp(d, t, n)
def L(s): return [x for x in s.split("\n") if x.strip()]

class G:
    def __init__(self, opt):
        self.a = AQ(); self.n = 0; self.opt = opt; self._late = []
    def o(self, k, d): return type(d)(self.opt.get(k, d))
    def lab(self, p="L"):
        self.n += 1; return f"{p}{self.n}"
    def stamp(self, idx):
        if self.opt.get("stamps"): self.a(f"s_memrealtime s[88:89]\ns_waitcnt lgkmcnt(0)\ns_mov_b32 s{18+idx}, s88")
    def stamp_flush(self):
        if not self.opt.get("stamps"): return
        a = self.a
        a("s_waitcnt vmcnt(0)"); self.stamp(13)
        for i in range(14): a(f"v_mov_b32 v{32+i}, s{18+i}")
        a(f"s_getreg_b32 s90, hwreg(HW_REG_XCC_ID)\nv_mov_b32 v46, s90\nv_mov_b32 v47, s91")
        a(f"s_lshl_b32 s90, s2, 2\ns_add_u32 s90, s90, s{sWV}\ns_lshl_b32 s90, s90, 6\ns_add_u32 s90, s90, {STAMP}\nv_mov_b32 v31, 0\ns_mov_b64 exec, 1")
        for i in range(4): a(f"buffer_store_dwordx4 {V(32+4*i)}, v31, {S(sWS)}, s90 offen offset:{16*i}")
        a("s_mov_b64 exec, -1")
    def srd(self, d, b, n): self.a(f"s_mov_b32 s{d}, s{b}\ns_and_b32 s{d+1}, s{b+1}, 0xffff\ns_mov_b32 s{d+2}, {n}\ns_mov_b32 s{d+3}, 0x20000")

    def start(self):
        a = self.a
        a("s_cmp_ge_u32 s2, 256\ns_cbranch_scc1 Kend")
        a("s_load_dwordx16 s[4:19], s[0:1], 0\ns_load_dwordx8 s[20:27], s[0:1], 64\ns_load_dwordx4 s[28:31], s[0:1], 96")
        if self.opt.get("stamps"): a("s_memrealtime s[90:91]")
        a(f"v_and_b32 v{vL}, 63, v0\nv_lshrrev_b32 v{vL16}, 6, v0\ns_getpc_b64 s[36:37]\nPC0:\nv_readfirstlane_b32 s{sWV}, v{vL16}\nv_lshlrev_b32 v{vL16}, 4, v{vL}")
        a("s_sub_u32 s36, s36, PC0-KSTART\ns_subb_u32 s37, s37, 0\ns_and_b32 s37, s37, 0xffff\ns_mov_b32 s38, KEND-KSTART\ns_mov_b32 s39, 0x20000")
        a(f"v_lshlrev_b32 v246, 7, v{vL}\ns_lshl_b32 s40, s{sWV}, 13")
        l = self.lab()
        a(f"s_cmp_ge_u32 s2, {self.o('cpfwg', 16)}\ns_cbranch_scc1 {l}\nbuffer_load_dword v245, v246, s[36:39], s40 offen\n{l}:"); a.vm -= 1
        a(f"v_cmp_gt_u32 vcc, 56, v{vL}\nv_mov_b32 v9, 0x80000000\ns_lshl_b32 s3, s2, 3\ns_lshl_b32 s41, s{sWV}, 1\nv_cndmask_b32 v9, v9, v{vL16}, vcc\nv_cndmask_b32 v10, 0, 1.0, vcc\nv_mov_b32 v11, 0x3b124925")
        a(f"s_add_u32 s3, s3, s41\ns_mul_i32 s41, s3, 896\nv_mov_b32 v31, 0\ns_mov_b32 s42, {FL_EP}\ns_waitcnt lgkmcnt(0)")
        self.srd(sX, 4, 1835008)
        a(f"buffer_load_dwordx4 {V(32)}, v9, {S(sX)}, s41 offen\nbuffer_load_dwordx4 {V(64)}, v9, {S(sX)}, s41 offen offset:896")
        self.srd(sWS, 30, WS_SZ)
        a(f"buffer_load_dword v247, v31, {S(sWS)}, s42 offen sc1")
        mx = a.mark()
        self.srd(sW1, 18, 7340032)
        self.touch(sW1, 3584, 64, 246)
        for d, b, n in ((sK, 6, 1835008), (sV, 8, 1835008), (sSHK, 10, 3584), (sSSMK, 12, 1835008), (sSSMD, 14, 896),
                        (sB1, 20, 3584), (sW2, 22, 7340032), (sB2, 24, 4096), (sOUT, 26, 1835008)): self.srd(d, b, n)
        if self.opt.get("stamps"):
            a("s_mov_b32 s91, s90")
            for i in range(14): a(f"s_mov_b32 s{18+i}, 0")
        a("s_and_b32 s4, s2, 7\ns_lshr_b32 s5, s2, 3\ns_mul_i32 s6, s5, 37\ns_lshr_b32 s6, s6, 8\ns_mul_i32 s7, s6, 7\ns_sub_u32 s7, s5, s7")
        a(f"s_mov_b32 s{sDT2}, s7\ns_lshl_b32 s8, s6, 3\ns_add_u32 s{sST}, s8, s4\ns_cmp_lt_u32 s5, 28\ns_cselect_b32 s{sHAS2}, 1, 0")
        a(f"s_and_b32 s9, s4, 1\ns_lshl_b32 s10, s9, 2\ns_add_u32 s10, s10, s7\ns_lshr_b32 s11, s4, 1\ns_add_u32 s11, s11, 24")
        a(f"s_sub_u32 s12, 4, s9\ns_cmp_lt_u32 s7, s12\ns_cselect_b32 s13, 1, 0\ns_cmp_lt_u32 s5, 28\ns_cselect_b32 s13, s13, 0")
        a(f"s_cmp_lt_u32 s5, 21\ns_cselect_b32 s{sDT1}, s7, s10\ns_cselect_b32 s{sFT}, s{sST}, s11\ns_cselect_b32 s{sHAS1}, 1, s13")
        a(f"s_sub_u32 s14, s5, 28\ns_sub_u32 s15, s7, s12\ns_add_u32 s15, s15, 4\ns_cmp_ge_u32 s5, 28\ns_cselect_b32 s{sHI}, s14, s15")
        return mx
    def touch(self, srd, pitch, nrows, vdst):
        a = self.a
        a(f"v_mul_u32_u24 v{vdst}, {pitch}, v{vL}\ns_lshr_b32 s92, s2, 3\ns_and_b32 s93, s92, 7\ns_lshl_b32 s93, s93, 2\ns_add_u32 s93, s93, s{sWV}\ns_mul_i32 s93, s93, {nrows*pitch}")
        a(f"s_lshr_b32 s92, s92, 3\ns_lshl_b32 s100, s92, 3\ns_and_b32 s99, s2, 7\ns_add_u32 s100, s100, s99")
        if pitch == 3584: a(f"s_lshr_b32 s99, s99, 1\ns_add_u32 s99, s99, 24\ns_cmp_eq_u32 s92, 3\ns_cselect_b32 s100, s99, s100")
        a(f"s_lshl_b32 s100, s100, 7\ns_add_u32 s93, s93, s100")
        if nrows < 64: a(f"s_mov_b32 exec_hi, {(1<<(nrows-32))-1:#x}")
        a(f"buffer_load_dword v{vdst}, v{vdst}, {S(srd)}, s93 offen")
        if nrows < 64: a("s_mov_b32 exec_hi, -1")

    def ln_rowops(self, b, sr):
        X, F, Gd, T, M, RS, Vv, P = b, b + 4, b + 12, b + 20, b + 24, b + 26, b + 28, b + 29
        o = []
        def red():
            for m in ("row_shr:1 row_mask:0xf", "row_shr:2 row_mask:0xf", "row_shr:4 row_mask:0xf", "row_shr:8 row_mask:0xf", "row_bcast:15 row_mask:0xa", "row_bcast:31 row_mask:0xc"):
                o.append(f"v_add_f32_dpp v{T}, v{T}, v{T} {m} bank_mask:0xf")
            o.append(f"v_readlane_b32 s{sr}, v{T}, 63")
        def sub(): return [f"v_pk_add_f32 {P2(Gd+2*j)}, {P2(F+2*j)}, {P2(M)} op_sel_hi:[1,0] neg_lo:[0,1] neg_hi:[0,1]" for j in range(4)]
        def norm(first):
            o.extend([f"v_pk_add_f32 {P2(T)}, {P2(F)}, {P2(F+2)}", f"v_pk_add_f32 {P2(T+2)}, {P2(F+4)}, {P2(F+6)}",
                      f"v_pk_add_f32 {P2(T)}, {P2(T)}, {P2(T+2)}", f"v_add_f32 v{T}, v{T}, v{T+1}"])
            if not first: o.append(f"v_mul_f32 v{T}, v{T}, v10")
            red()
            o.append(f"v_mul_f32 v{M}, s{sr}, v11")
            o.extend(sub())
            o.append(f"v_pk_mul_f32 {P2(T)}, {P2(Gd)}, {P2(Gd)}")
            for j in range(1, 4): o.append(f"v_pk_fma_f32 {P2(T)}, {P2(Gd+2*j)}, {P2(Gd+2*j)}, {P2(T)}")
            o.extend([f"v_add_f32 v{T}, v{T}, v{T+1}", f"v_mul_f32 v{T}, v{T}, v10"])
            red()
            o.extend([f"v_mul_f32 v{Vv}, s{sr}, v11", f"v_cvt_pk_bf16_f32 v{P}, v{Vv}, v{M}", f"v_lshlrev_b32 v{Vv}, 16, v{P}", f"v_and_b32 v{M}, 0xffff0000, v{P}",
                      f"v_add_f32 v{Vv}, 0x3727c5ac, v{Vv}", f"v_cvt_pk_bf16_f32 v{P}, v{Vv}, v{Vv}", f"v_lshlrev_b32 v{Vv}, 16, v{P}", f"v_sqrt_f32 v{Vv}, v{Vv}",
                      f"v_cvt_pk_bf16_f32 v{P}, v{Vv}, v{Vv}", f"v_lshlrev_b32 v{Vv}, 16, v{P}", f"v_rcp_f32 v{RS}, v{Vv}"])
            o.extend(sub()); o.extend(pack(X, Gd, 4)); o.extend(unp(F, X, 4))
            o.extend([f"v_pk_mul_f32 {P2(F+2*j)}, {P2(F+2*j)}, {P2(RS)} op_sel_hi:[1,0]" for j in range(4)])
            o.extend(pack(X, F, 4))
            if first: o.extend([f"v_mov_b32 v{b+30}, v{M}", f"v_mov_b32 v{b+31}, v{RS}"])
        o.extend(unp(F, X, 4)); norm(True); o.extend(unp(F, X, 4)); norm(False)
        return o
    def ln_addr(self):
        a = self.a
        a(f"s_lshl_b32 s6, s{sWV}, 1\ns_mul_i32 s6, s6, {HSP}\ns_add_u32 s6, s6, {HS}\nv_add_u32 v12, s6, v{vL16}")
        a(f"v_bfe_u32 v13, v{vL}, 2, 2\nv_mul_u32_u24 v13, {HSP}, v13\nv_lshrrev_b32 v14, 4, v{vL}\nv_lshl_add_u32 v13, v14, 5, v13")
        a(f"v_and_b32 v15, 3, v{vL}\nv_lshl_add_u32 v13, v15, 3, v13\ns_lshl_b32 s6, s{sWV}, 7\ns_add_u32 s6, s6, {HS}\nv_add_u32 v13, s6, v13")
        a(f"v_lshlrev_b32 v14, 10, v14\nv_and_b32 v15, 15, v{vL}\nv_lshl_add_u32 v14, v15, 4, v14")
        a(f"s_lshr_b32 s6, s2, 2\ns_lshl_b32 s7, s{sWV}, 6\ns_add_u32 s6, s6, s7\ns_lshl_b32 s6, s6, 12\ns_and_b32 s7, s2, 3\ns_lshl_b32 s7, s7, 8\ns_add_u32 s6, s6, s7")
        a(f"s_add_u32 s7, s6, {4*64*4096}\ns_cmp_eq_u32 s{sWV}, 3\ns_cselect_b32 s7, {OOB}, s7\ns_lshl_b32 s5, s3, 3\ns_add_u32 s5, s5, {ST}")
    def ln_compute(self):
        a = self.a
        for x, y in zip(self.ln_rowops(32, 8), self.ln_rowops(64, 9)): a(x); a(y)
        a(f"ds_write_b128 v12, {V(32)}\nds_write_b128 v12, {V(64)} offset:{HSP}")
        a(f"v_mov_b64 v[60:61], v[94:95]\nv_mov_b64 v[58:59], v[62:63]")
        a("s_waitcnt lgkmcnt(0)\ns_barrier")
        a(f"ds_read_b64_tr_b16 v[36:37], v13\nds_read_b64_tr_b16 v[38:39], v13 offset:{4*HSP}")
        a(f"ds_read_b64_tr_b16 v[40:41], v13 offset:512\nds_read_b64_tr_b16 v[42:43], v13 offset:{4*HSP+512}")
        a(f"s_mov_b64 exec, 1\nbuffer_store_dwordx4 {V(58)}, v31, {S(sWS)}, s5 offen sc1\ns_mov_b64 exec, -1")
        a(f"s_waitcnt lgkmcnt(2)\nbuffer_store_dwordx4 {V(36)}, v14, {S(sWS)}, s6 offen sc1")
        a(f"s_waitcnt lgkmcnt(0)\nbuffer_store_dwordx4 {V(40)}, v14, {S(sWS)}, s7 offen sc1")

    KF, VF, SKF, KO, KT = 120, 160, 176, 208, 224
    def kv_addr(self):
        a = self.a
        a(f"v_and_b32 v19, 7, v0\nv_lshrrev_b32 v18, 3, v0\nv_lshlrev_b32 v20, 6, v19\nv_lshlrev_b32 v19, 4, v19\nv_mul_u32_u24 v21, 1792, v18\nv_add_u32 v21, v21, v19")
        a(f"s_and_b32 s12, s2, 7\ns_mul_i32 s8, s12, {64*896}\ns_lshl_b32 s9, s{sHI}, 7\ns_add_u32 s8, s8, s9\nv_add_u32 v21, s8, v21")
        a(f"v_mul_u32_u24 v22, {2*TP}, v18\nv_add_u32 v22, v22, v19\nv_add_u32 v22, {KVS}, v22")
        a(f"v_lshrrev_b32 v24, 4, v{vL}\nv_bfe_u32 v23, v{vL}, 2, 2\nv_lshl_add_u32 v23, v24, 3, v23\nv_sub_u32 v23, 27, v23\nv_mul_u32_u24 v23, {TP}, v23")
        a(f"v_and_b32 v18, 3, v{vL}\nv_lshlrev_b32 v18, 3, v18\ns_lshl_b32 s8, s{sWV}, 5\ns_add_u32 s8, s8, {KVS}\nv_add3_u32 v23, v23, v18, s8")
        a(f"v_and_b32 v18, 15, v{vL}\nv_lshlrev_b32 v18, 12, v18\nv_lshl_add_u32 v24, v24, 4, v18")
        a(f"s_lshl_b32 s13, s{sHI}, 2\ns_add_u32 s13, s13, s{sWV}\ns_lshl_b32 s13, s13, 16\ns_lshl_b32 s8, s12, 7\ns_sub_u32 s13, s13, s8\ns_add_u32 s13, s13, {KVT + 3968}")
        a(f"s_lshl_b32 s14, s{sHI}, 5\ns_add_u32 s14, s14, s12\ns_lshl_b32 s15, s{sHI}, 9")
    def kv_load(self, R, t):
        a = self.a
        for j in range(5):
            d = t * 8 * 64 * 896 + (j - 3) * 896
            a(f"v_add_u32 v18, {d}, v21" if d >= 0 else f"v_subrev_u32 v18, {-d}, v21")
            a(f"buffer_load_dwordx4 {V(R+4*j)}, v18, {S(sK)}, 0 offen")
            if j >= 3: a(f"buffer_load_dwordx4 {V(R+20+4*(j-3))}, v18, {S(sV)}, 0 offen")
        return a.mark()
    def kv_compute(self, R, t, side, mprev):
        a = self.a; KF, VF, SF, O, T = self.KF, self.VF, self.SKF, self.KO, self.KT
        o = unp(KF, R, 20) + unp(VF, R + 20, 8)
        exact = self.o("ksx", 1)
        for tp in (3, 2, 1, 0):
            dst = O if (tp == 3 or not exact) else T
            for r in range(2):
                for e in range(0, 8, 2):
                    k = KF + 8 * (r + 3 - tp) + e; d = dst + 8 * r + e
                    o.append(f"v_pk_mul_f32 {P2(d)}, {P2(k)}, {P2(SF+8*tp+e)}" if (tp == 3 or exact) else f"v_pk_fma_f32 {P2(d)}, {P2(k)}, {P2(SF+8*tp+e)}, {P2(d)}")
            if exact:
                o += rnd(dst, R, 8)
                if tp != 3: o += [f"v_pk_add_f32 {P2(O+2*j)}, {P2(O+2*j)}, {P2(T+2*j)}" for j in range(8)] + rnd(O, R, 8)
        if not exact: o += rnd(O, R, 8)
        o += [f"v_pk_mul_f32 {P2(O+2*j)}, {P2(O+2*j)}, {P2(VF+2*j)}" for j in range(8)] + pack(R, O, 8)
        step = len(o) // (len(side) + 1) if side else 0
        for k, x in enumerate(o):
            a(x)
            if side and k % step == step - 1 and k // step < len(side): a(side[k // step])
        if t: a.wait(mprev); self.publish(FL_KV, f"s_add_u32 s8, s14, {8*(t-1)}")
        a(f"ds_write_b128 v22, {V(R)}\nds_write_b128 v22, {V(R+4)} offset:{TP}\ns_waitcnt lgkmcnt(0)\ns_barrier")
        for j in range(2):
            for h in range(2): a(f"ds_read_b64_tr_b16 {P2(T+4*j+2*h)}, v23 offset:{(32*(1-j) + 4*(1-h))*TP}")
        a(f"s_waitcnt lgkmcnt(2)\nbuffer_store_dwordx4 {V(T)}, v24, {S(sWS)}, s13 offen sc1")
        a(f"s_waitcnt lgkmcnt(0)\nbuffer_store_dwordx4 {V(T+4)}, v24, {S(sWS)}, s13 offen offset:64 sc1\ns_sub_u32 s13, s13, 1024")
        return a.mark()
    def helper(self, mh):
        a = self.a; RB = (32, 76); SKR = 104; ml = {}; ms = {}
        nohelp = self.lab(); done = self.lab()
        a(f"s_cmp_ge_u32 s{sHI}, 7\ns_cbranch_scc1 {nohelp}")
        m0 = a.mark()
        for j in range(4): a(f"buffer_load_dwordx4 {V(SKR+4*j)}, v20, {S(sSHK)}, s15 offen offset:{16*j}")
        ml[0] = self.kv_load(RB[0], 0)
        a.wait(m0); self.publish(FL_LN, "s_mov_b32 s8, s2")
        ml[1] = self.kv_load(RB[1], 1)
        a.wait(ml[0])
        for e in range(8):
            a(f"v_lshlrev_b32 v{self.SKF+e}, 16, v{SKR+2*e}\nv_and_b32 v{self.SKF+8+e}, 0xffff0000, v{SKR+2*e}")
            a(f"v_lshlrev_b32 v{self.SKF+16+e}, 16, v{SKR+2*e+1}\nv_and_b32 v{self.SKF+24+e}, 0xffff0000, v{SKR+2*e+1}")
        a(f"v_lshlrev_b32 v25, 7, v{vL}\ns_lshl_b32 s16, s{sHI}, 6\ns_lshl_b32 s8, s{sWV}, 4\ns_add_u32 s16, s16, s8\ns_lshl_b32 s16, s16, 12\ns_add_u32 s16, s16, {HF}")
        def ht(k): return f"buffer_load_dword v{240+k}, v25, {S(sWS)}, s16 offen sc1\ns_add_u32 s16, s16, 8192"
        HT = self.o("htouch", 0)
        sides = {0: [], 1: [ht(k) for k in range(2, 6)] if HT else [], 2: [ht(k) for k in range(6, 8)] if HT else [], 3: []}
        for t in range(4):
            if t: a.wait(ml[t])
            if t == 1 and HT:
                self.poll(FL_LN, 64, f"s_lshl_b32 s8, s{sWV}, 6"); a(ht(0)); a(ht(1))
            ms[t] = self.kv_compute(RB[t & 1], t, sides[t], ms.get(t - 1))
            if t + 2 < 4: ml[t + 2] = self.kv_load(RB[t & 1], t + 2)
            self.stamp(4 + t)
        a.wait(ms[3]); self.publish(FL_KV, "s_add_u32 s8, s14, 24")
        a(f"s_branch {done}\n{nohelp}:\ns_waitcnt vmcnt(0)"); self.publish(FL_LN, "s_mov_b32 s8, s2"); a(f"{done}:")

    def publish(self, base, sidx):
        a = self.a
        a(sidx)
        a(f"s_lshl_b32 s8, s8, 7\ns_add_u32 s8, s8, {base}\ns_cmp_eq_u32 s{sWV}, 0\ns_cselect_b32 s8, s8, {OOB}\nv_mov_b32 v30, s{sTAG}\nv_mov_b32 v31, 0")
        if self.o("pub0", 0): a("s_waitcnt vmcnt(0)")
        a(f"s_barrier\ns_mov_b64 exec, 1\nbuffer_store_dword v30, v31, {S(sWS)}, s8 offen sc1\ns_mov_b64 exec, -1")
    def poll_issue(self, base, n, sidx, vr, sr):
        a = self.a
        a(sidx)
        a(f"s_lshl_b32 s{sr}, s8, 7\ns_add_u32 s{sr}, s{sr}, {base}\nv_min_u32 v{vr}, {n-1}, v{vL}\nv_lshlrev_b32 v{vr}, 7, v{vr}")
        a(f"buffer_load_dword v{vr+1}, v{vr}, {S(sWS)}, s{sr} offen sc1")
        return a.mark()
    def poll_check(self, mark, vr, sr):
        a = self.a
        l, d = self.lab("P"), self.lab("Q")
        a.wait(mark)
        a(f"s_mov_b32 s9, 0\n{l}:\nv_cmp_ne_u32 vcc, s{sTAG}, v{vr+1}\ns_nop 4\ns_cbranch_vccz {d}")
        a(f"s_sleep {self.o('psleep', 4)}\nbuffer_load_dword v{vr+1}, v{vr}, {S(sWS)}, s{sr} offen sc1\ns_add_u32 s9, s9, 1\ns_cmp_lt_u32 s9, 0x40000\ns_waitcnt vmcnt(0)\ns_cbranch_scc1 {l}\n{d}:")
        a.vm -= 1
    def poll(self, base, n, sidx):
        self.poll_check(self.poll_issue(base, n, sidx, 30, 10), 30, 10)

    def kc_load(self):
        o = L(f"s_lshl_b32 s8, s{sDT2}, 5\ns_add_u32 s8, s8, s{sST}\ns_lshl_b32 s13, s8, 2\ns_lshl_b32 s8, s8, 13")
        o += L(f"s_lshr_b32 s9, s{sWV}, 1\ns_and_b32 s12, s{sWV}, 1\ns_lshl_b32 s14, s9, 12\ns_add_u32 s14, s14, s8\ns_lshl_b32 s12, s12, 2\ns_add_u32 s14, s14, s12")
        o += L(f"s_mul_i32 s12, s{sWV}, {2*CP}\ns_add_u32 s12, s12, {KC+32}\ns_lshl_b32 s9, s9, 1\ns_add_u32 s13, s13, s9")
        o += L(f"v_bfe_u32 v19, v{vL}, 2, 1\nv_lshlrev_b32 v19, 12, v19\nbuffer_load_dwordx2 v[20:21], v19, {S(sSSMK)}, s8 offen\nv_mov_b32 v19, 0\nbuffer_load_ushort v11, v19, {S(sSSMD)}, s13 offen")
        for p in range(2):
            if p: o += L(f"s_add_u32 s14, s14, 2\ns_add_u32 s12, s12, {CP}")
            o.append("s_mov_b32 m0, s12")
            for pc in range(4): o.append(f"buffer_load_dwordx4 v{vL16}, {S(sSSMK)}, s14 offen offset:{pc*1024} lds")
        return o
    def kc_fix(self):
        a = self.a
        a(f"v_and_b32 v19, 3, v{vL}\nv_lshlrev_b32 v22, 4, v19\nv_sub_u32 v22, 48, v22\nv_lshlrev_b64 v[26:27], v22, v[20:21]\nv_lshlrev_b64 v[26:27], 16, v[26:27]")
        a(f"v_mov_b64 v[20:21], 0\nv_mov_b64 v[22:23], 0\nv_mov_b64 v[24:25], 0\nv_and_b32 v19, 7, v{vL}\nv_mul_u32_u24 v19, {CP}, v19")
        a(f"s_mov_b64 exec, 0xff\nds_write_b128 v19, v[20:23] offset:{KC}\nds_write_b128 v19, v[24:27] offset:{KC+16}\ns_mov_b64 exec, -1")
    def ur_load(self):
        a = self.a
        a(f"s_lshl_b32 s8, s{sDT2}, 5\ns_add_u32 s8, s8, s{sST}\ns_lshl_b32 s8, s8, 13\ns_lshl_b32 s9, s{sWV}, 11\ns_add_u32 s8, s8, s9\ns_add_u32 s8, s8, {KVT}")
        a(f"buffer_load_dwordx4 {V(240)}, v{vL16}, {S(sWS)}, s8 offen sc1\nbuffer_load_dwordx4 {V(244)}, v{vL16}, {S(sWS)}, s8 offen offset:1024 sc1")
    def ur_write(self):
        a = self.a
        a(f"s_lshr_b32 s8, s{sWV}, 1\ns_mul_i32 s8, s8, 4608\ns_and_b32 s9, s{sWV}, 1\ns_lshl_b32 s10, s9, 11\ns_add_u32 s10, s10, s8\nv_add_u32 v19, s10, v{vL16}")
        a(f"ds_write_b128 v19, {V(240)} offset:{UR}\nds_write_b128 v19, {V(244)} offset:{UR+1024}")
        a(f"s_lshl_b32 s9, s9, 8\ns_add_u32 s8, s8, s9\nv_add_u32 v19, s8, v{vL16}\nv_mov_b64 v[20:21], 0\nv_mov_b64 v[22:23], 0")
        a(f"s_mov_b64 exec, 0xffff\nds_write_b128 v19, v[20:23] offset:{UR+4096}\ns_mov_b64 exec, -1")
    def conv_addr(self):
        o = L(f"v_and_b32 v16, 15, v{vL}\nv_lshrrev_b32 v17, 4, v{vL}\nv_add_u32 v18, 1, v16\nv_and_b32 v166, 3, v18\nv_mul_u32_u24 v166, {CP}, v166\nv_and_b32 v18, 28, v18")
        o += L(f"v_lshl_add_u32 v18, v17, 3, v18\nv_lshl_add_u32 v166, v18, 1, v166")
        o += L(f"s_lshr_b32 s14, s{sWV}, 1\ns_and_b32 s15, s{sWV}, 1\ns_mul_i32 s12, s14, {4*CP}\ns_lshl_b32 s11, s15, 8\ns_add_u32 s12, s12, s11\ns_add_u32 s12, s12, {KC}\nv_add_u32 v166, s12, v166")
        o += L(f"v_lshlrev_b32 v18, 1, v16\nv_sub_u32 v18, v17, v18\nv_add_u32 v18, 30, v18\nv_lshlrev_b32 v167, 4, v18")
        o += L(f"s_mul_i32 s13, s14, 4608\ns_add_u32 s12, s13, s11\ns_add_u32 s12, s12, {UR}\nv_add_u32 v167, s12, v167")
        o += L(f"v_lshlrev_b32 v18, 2, v16\nv_add_u32 v18, v18, v17\nv_lshlrev_b32 v18, 3, v18\ns_lshl_b32 s11, s15, 11\ns_sub_u32 s13, s13, s11\ns_add_u32 s13, s13, {UR + 2*(2044-768)}\nv_sub_u32 v168, s13, v18")
        return o
    def conv(self, side, every=None, tail=None):
        tail = tail or (lambda: None)
        a = self.a
        CA, AS, BS = 32, 192, 64
        def reads(r):
            s = r & 1; o = []
            for k in range(8):
                o.append(f"ds_read_b64 {P2(AS+32*s+4*k)}, v166 offset:{64*(8*k+r)}")
                o.append(f"ds_read_b64 {P2(AS+32*s+4*k+2)}, v166 offset:{64*(8*k+r)+8}")
                o.append(f"ds_read_b128 {V(BS+32*s+4*k)}, v167 offset:{(256*(7-k)+32*r)*2}")
            return o
        a("s_waitcnt lgkmcnt(0)\ns_barrier")
        a(reads(0))
        n = 0
        for r in range(4):
            s = r & 1
            nxt = reads(r + 1) if r < 3 else []
            mf = sorted((pp, t - pp) for t in range(8) for pp in range(t + 1))
            a("s_waitcnt lgkmcnt(0)")
            for k, (pp, q) in enumerate(mf):
                c = V(CA+4*(pp+q)); cin = "0" if (r == 0 and pp == 0) else c
                a(f"v_mfma_f32_16x16x32_bf16 {c}, {V(AS+32*s+4*pp)}, {V(BS+32*s+4*q)}, {cin}")
                if k < len(nxt): a(nxt[k])
                if n in side: a(side[n])
                if every: every(n)
                n += 1
        self.stamp(12)
        a(f"s_and_b32 s15, s{sWV}, 1")
        a(f"s_lshl_b32 s10, s{sWV}, 12\ns_add_u32 s10, s10, {XCHC}\nv_add_u32 v14, s10, v{vL16}\ns_xor_b32 s10, s{sWV}, 1\ns_lshl_b32 s10, s10, 12\ns_add_u32 s10, s10, {XCHC}\nv_add_u32 v15, s10, v{vL16}")
        for b in range(4): a(f"ds_read_b64 {P2(96+2*b)}, v168 offset:{512*(3-b)}")
        l1, l2 = self.lab(), self.lab()
        a(f"s_barrier\ns_cmp_eq_u32 s15, 0\ns_cbranch_scc1 {l1}")
        for k in range(4): a(f"ds_write_b128 v14, {V(CA+4*k)} offset:{1024*k}")
        for k in range(8): a(f"v_mov_b64 {P2(CA+2*k)}, {P2(CA+16+2*k)}")
        a(f"s_branch {l2}\n{l1}:\ns_nop 7")
        for k in range(4): a(f"ds_write_b128 v14, {V(CA+16+4*k)} offset:{1024*k}")
        a(f"{l2}:")
        a(f"v_lshlrev_b32 v10, 16, v11\ns_waitcnt lgkmcnt(4)")
        for b in range(4):
            a(f"v_and_b32 v{104+4*b}, 0xffff0000, v{97+2*b}\nv_lshlrev_b32 v{105+4*b}, 16, v{97+2*b}\nv_and_b32 v{106+4*b}, 0xffff0000, v{96+2*b}\nv_lshlrev_b32 v{107+4*b}, 16, v{96+2*b}")
        a("s_waitcnt lgkmcnt(0)\ns_barrier")
        for k in range(4): a(f"ds_read_b128 {V(64+4*k)}, v15 offset:{1024*k}")
        for j in range(8): a(f"v_pk_mul_f32 {P2(104+2*j)}, {P2(104+2*j)}, {P2(10)} op_sel_hi:[1,0]")
        self.sprinkle(rnd(104, 96, 8), 6, tail)
        a(f"v_bfe_u32 v16, v{vL}, 4, 1\nv_lshlrev_b32 v16, 9, v16\nv_and_b32 v17, 15, v{vL}\nv_lshl_add_u32 v16, v17, 5, v16\nv_lshrrev_b32 v17, 5, v{vL}\nv_lshl_add_u32 v16, v17, 4, v16")
        a(f"s_lshl_b32 s10, s{sDT2}, 5\ns_add_u32 s10, s10, s{sST}\ns_lshl_b32 s10, s10, 13\ns_lshl_b32 s11, s{sWV}, 11\ns_add_u32 s10, s10, s11\ns_add_u32 s10, s10, {YT}")
        a("s_waitcnt lgkmcnt(0)")
        for k in range(8): a(f"v_pk_add_f32 {P2(CA+2*k)}, {P2(CA+2*k)}, {P2(64+2*k)}")
        self.sprinkle(rnd(CA, 96, 8), 6, tail)
        for k in range(8): a(f"v_pk_add_f32 {P2(CA+2*k)}, {P2(CA+2*k)}, {P2(104+2*k)}")
        a(pack(80, CA, 8))
        for pr in range(2):
            a(f"v_permlane16_swap_b32 v{80+4*pr}, v{82+4*pr}\nv_permlane16_swap_b32 v{81+4*pr}, v{83+4*pr}")
            a(f"buffer_store_dwordx4 {V(80+4*pr)}, v16, {S(sWS)}, s10 offen offset:{1024*pr} sc1")

    def wp_init(self, pitch, rows_per_wave, scol):
        o = L(f"v_lshrrev_b32 v16, 3, v{vL}\nv_and_b32 v17, 7, v{vL}\nv_bfe_u32 v18, v{vL}, 4, 1\nv_lshlrev_b32 v18, 1, v18\nv_xor_b32 v17, v17, v18\nv_lshlrev_b32 v17, 4, v17")
        o += L(f"v_mul_u32_u24 v16, {pitch}, v16\nv_add_u32 v{vDE}, v16, v17\nv_xor_b32 v17, 64, v17\nv_add_u32 v{vDO}, v16, v17")
        o += L(f"s_mul_i32 s{sWO}, s{sWV}, {rows_per_wave*pitch}\ns_lshl_b32 s{sWR}, s{scol}, 7\ns_add_u32 s{sWO}, s{sWO}, s{sWR}\ns_mul_i32 s{sWR}, s{sWV}, {RSLOTS*4096}\ns_add_u32 s{sWR}, s{sWR}, {RING}")
        return o
    def t_addr(self):
        a = self.a
        a(f"v_lshrrev_b32 v16, 4, v{vL}\nv_bfe_u32 v17, v{vL}, 2, 2\nv_and_b32 v18, 3, v{vL}\nv_lshlrev_b32 v19, 10, v16\nv_lshl_add_u32 v19, v17, 7, v19\nv_lshl_add_u32 v19, v18, 3, v19")
        a(f"s_mul_i32 s8, s{sWV}, {RSLOTS*4096}\ns_add_u32 s8, s8, {RING}\nv_add_u32 v19, s8, v19")
        a(f"v_lshrrev_b32 v17, 1, v17\nv_and_b32 v16, 1, v16\nv_lshl_add_u32 v16, v16, 1, v17")
        for j in range(4): a(f"s_add_u32 s8, s{sWV}, {j+1}\ns_and_b32 s8, s8, 3\nv_xor_b32 v17, s8, v16\nv_lshl_add_u32 v{vT+j}, v17, 5, v19")
    def wp_ops(self, srd, pitch, pos):
        o = []
        for pc in range(4):
            o += [f"s_add_u32 m0, s{sWR}, {(pos % RSLOTS)*4096+pc*1024}", f"buffer_load_dwordx4 v{vDO if pc&1 else vDE}, {S(srd)}, s{sWO} offen lds", f"s_add_u32 s{sWO}, s{sWO}, {8*pitch}"]
        return o
    def wp_issue(self, srd, pitch, pos):
        self.a(self.wp_ops(srd, pitch, pos)); return self.a.mark()
    def w_tr(self, pos):
        return [f"ds_read_b64_tr_b16 a[{16*pos+4*j+2*h}:{16*pos+4*j+2*h+1}], v{vT+j} offset:{(pos % RSLOTS)*4096+h*512}" for j in range(4) for h in range(2)]

    def wq_init(self, srd, pitch, n):
        self.wq = [(p, pc) for p in range(n) for pc in range(4)]; self.wqs = (srd, pitch); self.wqm = {}
    def wq_pop(self, n=1, upto=99):
        srd, pitch = self.wqs
        for _ in range(n):
            if not self.wq or self.wq[0][0] >= upto: return
            p, pc = self.wq.pop(0)
            self.a(self.wp_ops(srd, pitch, p)[3*pc:3*pc+3])
            if pc == 3: self.wqm[p] = self.a.mark()
    def wq_use(self, p):
        self.a.wait(self.wqm[p]); self.a(self.w_tr(p))
    def sprinkle(self, ops, every, fn):
        for k, x in enumerate(ops):
            self.a(x)
            if k % every == every - 1: fn()

    def red_addr(self):
        a = self.a
        for j in range(3):
            a(f"s_add_u32 s8, s{sWV}, {j+1}\ns_and_b32 s8, s8, 3\ns_mul_i32 s8, s8, {RSLOTS*4096}\ns_add_u32 s8, s8, {XIN+j*4096}\nv_add_u32 v{12+j}, s8, v{vL16}")
        a(f"s_mul_i32 s8, s{sWV}, {RSLOTS*4096}\ns_add_u32 s8, s8, {XIN}\nv_add_u32 v15, s8, v{vL16}")
    def gemm_pre(self): self.red_addr()
    def gemm(self, nsteps, w_is_A, hooks=None, fill=None, skew=3, after_first=None):
        DEPTH = self.o('depth', 4)
        a = self.a; marks = {}; hooks = hooks or {}; fill = fill or {}; q = []
        def loads(st):
            for i in range(4): a(f"buffer_load_dwordx4 {V(HR+16*(st%DEPTH)+4*i)}, v{vL16}, {S(sWS)}, s16 offen offset:{1024*i} sc1")
            a("s_add_u32 s16, s16, 4096"); marks[st] = a.mark()
        zf = self.o("zfill", 0)
        def mf(st, i, j, ds=None, nofill=False):
            w = AR(16*st+4*j); h = V(HR+16*(st%DEPTH)+4*i); c = V(ACC+16*j+4*i)
            if not self.o("nomfma", 0) or (i == 0 and j == 0): a(f"v_mfma_f32_16x16x32_bf16 {c}, {w if w_is_A else h}, {h if w_is_A else w}, {c if st else 0}")
            if ds and zf == 1: a(ds)
            if not (zf == 3 and nofill):
                for _ in range(2):
                    if q: a(q.pop(0))
            if ds and zf != 1: a(ds)
            if ds and zf == 2: a("s_nop 1")
        for st in range(DEPTH): loads(st)
        if after_first: after_first()
        for st in range(nsteps - skew):
            if st in hooks: hooks[st]()
            q.extend(fill.get(st, []))
            a.wait(marks[st])
            for i in range(4):
                for j in range(4): mf(st, i, j)
                if st + DEPTH < nsteps and self.o("spread", 1):
                    a(f"buffer_load_dwordx4 {V(HR+16*(st%DEPTH)+4*i)}, v{vL16}, {S(sWS)}, s16 offen offset:{1024*i} sc1")
                    if i == 3: a("s_add_u32 s16, s16, 4096"); marks[st + DEPTH] = a.mark()
            if st + DEPTH < nsteps and not self.o("spread", 1): loads(st + DEPTH)
        for st in range(nsteps - skew, nsteps + 1):
            if st in hooks: hooks[st]()
            q.extend(fill.get(st, []))
        pend = []; last = False
        for j in range(4):
            k = 0
            for st in range(nsteps - skew, nsteps):
                if j == 0: a.wait(marks[st])
                for i in range(4):
                    k += 1
                    ds = pend.pop(0) if (pend and k >= 3 and k % 2 == 1) else None
                    mf(st, i, j, ds, last); last = ds is not None
            a(pend); pend = []
            if j < 3: pend = [f"ds_write_b128 v{12+j}, {V(ACC+16*j+4*i)} offset:{1024*i}" for i in range(4)]
        a(q)
    def red_finish(self):
        a = self.a
        a("s_waitcnt lgkmcnt(0)\ns_barrier")
        for k in range(3):
            for i in range(4): a(f"ds_read_b128 {V(112+16*k+4*i)}, v15 offset:{k*4096+1024*i}")
        for k in range(3):
            a(f"s_waitcnt lgkmcnt({4*(2-k)})")
            for i in range(8): a(f"v_pk_add_f32 {P2(96+2*i)}, {P2((80 if k == 0 else 96)+2*i)}, {P2(112+16*k+2*i)}")
    def g1_pre(self):
        a = self.a
        a(f"v_lshrrev_b32 v19, 4, v{vL}\nv_lshlrev_b32 v19, 3, v19\ns_lshl_b32 s8, s{sFT}, 7\ns_lshl_b32 s9, s{sWV}, 5\ns_add_u32 s8, s8, s9\nbuffer_load_dwordx2 v[28:29], v19, {S(sB1)}, s8 offen")
        a(f"v_bfe_u32 v9, v{vL}, 4, 1\nv_lshlrev_b32 v9, 10, v9\nv_and_b32 v17, 15, v{vL}\nv_lshl_add_u32 v9, v17, 4, v9\nv_lshrrev_b32 v17, 5, v{vL}\nv_lshl_add_u32 v9, v17, 8, v9")
        a(f"s_mul_i32 s17, s{sDT1}, 56\ns_lshl_b32 s9, s{sFT}, 1\ns_add_u32 s17, s17, s9\ns_lshr_b32 s9, s{sWV}, 1\ns_add_u32 s17, s17, s9\ns_lshl_b32 s17, s17, 12")
        a(f"s_and_b32 s9, s{sWV}, 1\ns_lshl_b32 s9, s9, 9\ns_add_u32 s17, s17, s9\ns_add_u32 s17, s17, {UF}")
    def g1_epilogue(self):
        o = []
        if self.o("urnd", 1): o += rnd(96, 128, 8)
        o += [f"v_pk_add_f32 {P2(96+2*k)}, {P2(96+2*k)}, {P2(160+2*(k&1))}" for k in range(8)]
        if self.o("urnd", 1): o += rnd(96, 128, 8)
        o += [f"v_pk_mul_f32 {P2(112+2*k)}, {P2(96+2*k)}, {P2(96+2*k)}" for k in range(8)]
        o += [f"v_pk_fma_f32 {P2(112+2*k)}, {P2(112+2*k)}, {P2(164)}, {P2(164)} op_sel:[0,1,0] op_sel_hi:[1,1,0]" for k in range(8)]
        o += [f"v_pk_mul_f32 {P2(112+2*k)}, {P2(112+2*k)}, {P2(96+2*k)}" for k in range(8)]
        o += [f"v_exp_f32 v{112+k}, v{112+k}" for k in range(16)]
        o += [f"v_pk_add_f32 {P2(112+2*k)}, {P2(112+2*k)}, 1.0 op_sel_hi:[1,0]" for k in range(8)]
        o += [f"v_rcp_f32 v{112+k}, v{112+k}" for k in range(16)]
        for pr in range(2):
            o += [f"v_pk_mul_f32 {P2(96+2*k)}, {P2(96+2*k)}, {P2(112+2*k)}" for k in range(4*pr, 4*pr+4)]
            o += pack(128+4*pr, 96+8*pr, 4)
            o += [f"v_permlane16_swap_b32 v{128+4*pr}, v{130+4*pr}", f"v_permlane16_swap_b32 v{129+4*pr}, v{131+4*pr}"]
            o += [f"buffer_store_dwordx4 {V(128+4*pr)}, v9, {S(sWS)}, s17 offen offset:{2048*pr} sc1"]
        return o
    def g1_consts(self):
        c1 = -2.0 * 0.7978845608028654 * 1.4426950408889634
        return unp(160, 28, 2) + [f"v_mov_b32 v164, {f2h(c1)}", f"v_mov_b32 v165, {f2h(c1*0.044715)}"]

    XF, SF = 224, 208
    def x_load(self):
        a = self.a
        a(f"v_and_b32 v17, 15, v{vL}\nv_bfe_u32 v18, v{vL}, 4, 1\nv_lshrrev_b32 v19, 5, v{vL}\nv_lshlrev_b32 v18, 5, v18\nv_lshl_add_u32 v18, v19, 4, v18")
        a(f"v_mul_u32_u24 v19, 896, v17\nv_add_u32 v10, v19, v18")
        a(f"s_lshl_b32 s8, s{sST}, 6\ns_lshl_b32 s9, s{sWV}, 4\ns_add_u32 s8, s8, s9\ns_mul_i32 s17, s8, 896\ns_lshl_b32 s9, s{sDT2}, 7\ns_add_u32 s17, s17, s9")
        a(f"buffer_load_dwordx4 {V(192)}, v10, {S(sX)}, s17 offen\nbuffer_load_dwordx4 {V(196)}, v10, {S(sX)}, s17 offen offset:64")
        a(f"v_lshlrev_b32 v19, 3, v17\ns_lshl_b32 s9, s8, 3\ns_add_u32 s9, s9, {ST}\nbuffer_load_dwordx2 v[248:249], v19, {S(sWS)}, s9 offen sc1")
        a(f"v_lshlrev_b32 v19, 1, v17\ns_lshl_b32 s9, s8, 1\nbuffer_load_ushort v29, v19, {S(sB2)}, s9 offen")
        a(f"v_lshrrev_b32 v19, 3, v0\nv_and_b32 v17, 7, v0\nv_lshlrev_b32 v17, 4, v17\nv_lshl_add_u32 v11, v19, 12, v17\nv_mul_u32_u24 v19, {TP}, v19\nv_add_u32 v9, v19, v17")
        a(f"v_bfe_u32 v17, v{vL}, 4, 1\nv_lshrrev_b32 v19, 5, v{vL}\nv_lshlrev_b32 v17, 4, v17\nv_lshl_add_u32 v17, v19, 3, v17\nv_bfe_u32 v19, v{vL}, 2, 2\nv_add_u32 v17, v17, v19\nv_mul_u32_u24 v17, {TP}, v17")
        a(f"v_and_b32 v19, 3, v{vL}\nv_lshlrev_b32 v19, 3, v19\ns_lshl_b32 s8, s{sWV}, 5\nv_add3_u32 v16, v17, v19, s8")
    def xn_ops(self):
        XF, SF = self.XF, self.SF
        o = ["v_xor_b32 v252, 0x80000000, v248", "v_xor_b32 v253, 0x80000000, v248", "v_mov_b32 v248, v249"]
        o += unp(XF, 192, 8) + [f"v_pk_add_f32 {P2(SF+2*j)}, {P2(XF+2*j)}, {P2(252)}" for j in range(8)] + rnd(SF, 192, 8)
        o += [f"v_pk_mul_f32 {P2(SF+2*j)}, {P2(SF+2*j)}, {P2(248)}" for j in range(8)] + rnd(SF, 192, 8)
        return o + ["v_lshlrev_b32 v28, 16, v29", "v_mov_b32 v20, 0xbfb8aa3b"]
    def z_load(self):
        a = self.a
        a(f"s_lshl_b32 s8, s{sDT2}, 18\ns_lshl_b32 s9, s{sST}, 7\ns_add_u32 s8, s8, s9\ns_add_u32 s8, s8, {YT}\ns_add_u32 s9, s8, {32*4096}")
        a(f"buffer_load_dwordx4 {V(240)}, v11, {S(sWS)}, s8 offen sc1\nbuffer_load_dwordx4 {V(244)}, v11, {S(sWS)}, s9 offen sc1")
        return a.mark()
    def z_write(self): self.a(f"ds_write_b128 v9, {V(240)} offset:{YS}\nds_write_b128 v9, {V(244)} offset:{YS+32*TP}")
    def z_read(self):
        for pr in range(2):
            for h in range(2): self.a(f"ds_read_b64_tr_b16 {P2(240+4*pr+2*h)}, v16 offset:{YS+(32*pr+4*h)*TP}")
    def s_ops(self):
        SF = self.SF
        return unp(176, 240, 8) + [f"v_pk_mul_f32 {P2(SF+2*j)}, {P2(SF+2*j)}, {P2(176+2*j)}" for j in range(8)] + rnd(SF, 192, 8)
    def g2_epilogue(self):
        a = self.a; XF, SF = self.XF, self.SF
        if self.o("yrnd", 1): a(rnd(96, 128, 8))
        for k in range(8): a(f"v_pk_add_f32 {P2(96+2*k)}, {P2(96+2*k)}, {P2(28)} op_sel_hi:[1,0]")
        if self.o("yrnd", 1): a(rnd(96, 128, 8))
        for k in range(8): a(f"v_pk_mul_f32 {P2(112+2*k)}, {P2(96+2*k)}, {P2(20)} op_sel_hi:[1,0]")
        for k in range(16): a(f"v_exp_f32 v{112+k}, v{112+k}")
        for k in range(8): a(f"v_pk_add_f32 {P2(112+2*k)}, {P2(112+2*k)}, 1.0 op_sel_hi:[1,0]")
        for k in range(16): a(f"v_rcp_f32 v{112+k}, v{112+k}")
        for pr in range(2):
            for k in range(4*pr, 4*pr+4): a(f"v_pk_mul_f32 {P2(96+2*k)}, {P2(96+2*k)}, {P2(112+2*k)}")
            a(pack(128+4*pr, 96+8*pr, 4))
            a(f"v_permlane16_swap_b32 v{128+4*pr}, v{130+4*pr}\nv_permlane16_swap_b32 v{129+4*pr}, v{131+4*pr}")
            a(unp(96+8*pr, 128+4*pr, 4))
            for j in range(4*pr, 4*pr+4): a(f"v_pk_mul_f32 {P2(96+2*j)}, {P2(96+2*j)}, {P2(SF+2*j)}")
            a(rnd(96+8*pr, 128+4*pr, 4))
            for j in range(4*pr, 4*pr+4): a(f"v_pk_add_f32 {P2(96+2*j)}, {P2(96+2*j)}, {P2(XF+2*j)}")
            a(pack(128+4*pr, 96+8*pr, 4))
            a(f"buffer_store_dwordx4 {V(128+4*pr)}, v10, {S(sOUT)}, s17 offen offset:{64*pr} {self.o('oflags', '')}")

def gen(opt):
    g = G(opt); a = g.a
    mx = g.start()
    g.stamp(0)
    l1, l2 = g.lab(), g.lab()
    g.t_addr(); g.ln_addr()
    a(g.wp_init(3584, 512, sFT)); g.kv_addr()
    a.wait(mx)
    a(f"v_readfirstlane_b32 s{sTAG}, v247\ns_mul_i32 s{sTAG}, s{sTAG}, 0x9E3779B1\ns_add_u32 s{sTAG}, s{sTAG}, 0x7F4A7C15")
    g.ln_compute(); mh = a.mark()
    g.stamp(1)
    a(f"s_cmp_eq_u32 s{sHAS1}, 0\ns_cbranch_scc1 ROLEBC")
    NB = g.o("nb", 4); wm = {}
    for p in range(NB): wm[p] = g.wp_issue(sW1, 3584, p)
    a.wait(mh); g.publish(FL_LN, "s_mov_b32 s8, s2")
    g.stamp(2)
    for p in range(NB, RSLOTS): wm[p] = g.wp_issue(sW1, 3584, p)
    g.g1_pre(); g.gemm_pre()
    a(f"s_lshl_b32 s16, s{sDT1}, 6\ns_lshl_b32 s8, s{sWV}, 4\ns_add_u32 s16, s16, s8\ns_lshl_b32 s16, s16, 12\ns_add_u32 s16, s16, {HF}")
    st = {}
    for p in range(10):
        a.wait(wm[p]); a(g.w_tr(p))
        a("s_waitcnt lgkmcnt(0)"); wm[p + RSLOTS] = g.wp_issue(sW1, 3584, p + RSLOTS)
    mf = g.poll_issue(FL_LN, 64, f"s_lshl_b32 s8, s{sWV}, 6", 30, 10)
    for p in range(10, 13): a.wait(wm[p]); a(g.w_tr(p))
    g.stamp(3)
    g.poll_check(mf, 30, 10)
    g.stamp(4)
    def first1():
        for p in range(13, 16): a(g.w_tr(p))
        a("s_waitcnt lgkmcnt(0)\ns_barrier")
    def h12():
        a(g.kc_load()); g.touch(sW2, 4096, 56, 169); st["kvf"] = g.poll_issue(FL_KV, 32, f"s_lshl_b32 s8, s{sDT2}, 5", 30, 10)
    g.gemm(16, True, hooks={g.o('h12', 12): h12}, fill={2: g.g1_consts(), 4: g.wp_init(4096, 448, sST), 6: g.conv_addr()}, after_first=first1)
    g.stamp(5)
    if g.o("trunc", 0): a("s_branch KFLUSH")
    g.red_finish()
    g.wq_init(sW2, 4096, 14)
    ep = g.g1_epilogue()
    NE = g.o("ne", 8)
    g.sprinkle(ep[:-12], len(ep[:-12]) // NE, lambda: g.wq_pop(1, NE // 4)); a(ep[-12:])
    g.stamp(6)
    g.poll_check(st["kvf"], 30, 10); g.ur_load(); mur = a.mark(); g.kc_fix()
    a.wait(mur); g.ur_write()
    a(f"s_mul_i32 s17, s{sDT1}, 28\ns_add_u32 s17, s17, s{sFT}")
    g.stamp(7)
    a("s_branch COMMON")
    a("ROLEBC:")
    g.helper(mh)
    g.stamp(3)
    g.touch(sW2, 4096, 56, 169)
    a(f"s_cmp_eq_u32 s{sHAS2}, 0\ns_cbranch_scc1 KFLUSH")
    if g.o("trunc", 0): a("s_branch KFLUSH")
    a(g.kc_load()); a(g.wp_init(4096, 448, sST)); a(g.conv_addr())
    a(f"s_sleep {g.o('bsleep', 16)}")
    g.poll(FL_KV, 32, f"s_lshl_b32 s8, s{sDT2}, 5")
    g.wq_init(sW2, 4096, 14); g.wq_pop(NE)
    g.ur_load(); mur = a.mark()
    g.kc_fix(); a.wait(mur); g.ur_write()
    a("s_mov_b32 s17, 0x100")
    a("COMMON:")
    for p in range(NE // 4): g.wqm[p] = a.mark()
    EV = g.o("ev", 4); used = [0]
    def every(n):
        if n % EV == EV - 1:
            lim = safe[0] + RSLOTS
            g.wq_pop(1, lim)
        if n % 36 == 35: safe[0] = used[0]
        if n % 12 == 5 and (used[0] + 1) in g.wqm or (n % 12 == 5 and used[0] < NE // 4):
            g.wq_use(used[0]); used[0] += 1
    safe = [0]
    g.conv({g.o("pubu", 0): lambda: g.publish(FL_U, "s_mov_b32 s8, s17")}, every, lambda: g.wq_pop(1, safe[0] + RSLOTS)); my = a.mark()
    g.stamp(8)
    mf = g.poll_issue(FL_U, 7, f"s_mul_i32 s8, s{sDT2}, 28\ns_mul_i32 s9, s{sWV}, 7\ns_add_u32 s8, s8, s9", 30, 10)
    ml = g.poll_issue(FL_LN, 8, f"s_lshl_b32 s8, s{sST}, 3", 250, 11)
    print("w2 stream: used", used[0], "left", len(g.wq), file=sys.stderr)
    while g.wq:
        if g.wq[0][0] >= safe[0] + RSLOTS:
            while used[0] + RSLOTS <= g.wq[0][0]: g.wq_use(used[0]); used[0] += 1
            a("s_waitcnt lgkmcnt(0)"); safe[0] = used[0]
        g.wq_pop(1)
    while used[0] < 12 : g.wq_use(used[0]); used[0] += 1
    g.gemm_pre()
    a(f"s_mul_i32 s16, s{sDT2}, 56\ns_mul_i32 s8, s{sWV}, 14\ns_add_u32 s16, s16, s8\ns_lshl_b32 s16, s16, 12\ns_add_u32 s16, s16, {UF}")
    g.poll_check(ml, 250, 11)
    g.poll_check(mf, 30, 10)
    g.stamp(9)
    def first2():
        g.x_load(); a("s_waitcnt lgkmcnt(0)")
        g.publish(FL_Y, f"s_lshl_b32 s8, s{sDT2}, 5\ns_add_u32 s8, s8, s{sST}")
        while used[0] < 14: g.wq_use(used[0]); used[0] += 1
        a("s_waitcnt lgkmcnt(0)")
    YA = g.o("ya", 6)
    def ya(): st["yf"] = g.poll_issue(FL_Y, 32, f"s_lshl_b32 s8, s{sDT2}, 5", 30, 10)
    def yb(): g.poll_check(st["yf"], 30, 10); st["z"] = g.z_load()
    def yc(): a.wait(st["z"]); g.z_write(); a("s_waitcnt lgkmcnt(0)\ns_barrier"); g.z_read(); a("s_waitcnt lgkmcnt(0)")
    g.gemm(14, False, hooks={YA: ya, YA + 2: yb, 11: yc}, fill={4: g.xn_ops(), 11: g.s_ops()}, after_first=first2)
    g.stamp(10)
    g.red_finish(); g.g2_epilogue()
    g.stamp(11)
    l = g.lab()
    a(f"s_or_b32 s8, s2, s{sWV}\ns_cmp_lg_u32 s8, 0\ns_cbranch_scc1 {l}\nv_mov_b32 v30, s{sTAG}\nv_mov_b32 v31, 0\ns_mov_b32 s8, {FL_EP}")
    a(f"s_mov_b64 exec, 1\nbuffer_store_dword v30, v31, {S(sWS)}, s8 offen sc1\ns_mov_b64 exec, -1\n{l}:")
    a("KFLUSH:"); g.stamp_flush(); a("Kend:")
    lines, n = hazard.fix(a.l)
    body = "\n".join(lines) + "\n"
    n = KN + "_kernel"
    txt = f"; @launch grid=(256,1,1) block=(256,1,1) lds={LDS_SZ}\n" + '.amdgcn_target "amdgcn-amd-amdhsa--gfx950"\n.text\n'
    txt += f".globl {n}\n.p2align 8\n.type {n},@function\n{n}:\nKSTART:\n" + body + "s_endpgm\nKEND:\n"
    txt += '.section .rodata,"a"\n.p2align 6\n' + kernel_desc(n, 512, 102, 256)
    return txt

if __name__ == "__main__":
    opt = dict(kv.split("=") for kv in sys.argv[2:])
    open(sys.argv[1], "w").write(gen(opt))
```

```python
import sys, struct
from asmlib import A, KN, kernel_desc
import hazard

HF, UF, KVT, YT, ST, FL = 0x0, 0x200000, 0x400000, 0x600000, 0x800000, 0x810000
WS_SZ = 0x1000000
FL_LN, FL_KV, FL_U, FL_Y, FL_EP = FL, FL + 0x10000, FL + 0x20000, FL + 0x30000, FL + 0x40000
STAMP = 0x900000
OOB = 0x40000000
import os
RP = int(os.environ.get('RP', 4096))
KC, UR, YS, HS, RING = 0, 33280, 42496, 33280, 51712
XCHC = 0
CP = 4160; HSP = 1040; TP = 144
RSLOTS = 6
KVS = RING
XIN = RING + 3 * 4096
LDS_SZ = RING + 4 * RSLOTS * 4096
sX, sK, sV, sSHK, sSSMK, sSSMD, sW1, sB1, sW2, sB2, sOUT, sWS = [32 + 4 * i for i in range(12)]
sWV, sDT1, sFT, sDT2, sST, sTAG, sHAS1, sHAS2 = 80, 81, 82, 83, 84, 85, 86, 87
sWK, sWB, sWR, sWO = 94, 95, 96, 97
sHI, sR1, sR2, sHB = 98, 94, 101, 3
def S(b): return f"s[{b}:{b+3}]"
def V(b, n=4): return f"v[{b}:{b+n-1}]" if n > 1 else f"v{b}"
def P2(r): return f"v[{r}:{r+1}]"
def AR(b, n=4): return f"a[{b}:{b+n-1}]"
def f2h(x): return "0x%08x" % struct.unpack("<I", struct.pack("<f", x))[0]
vL, vL16, vD, vT = 1, 2, 172, 5
ACC, HR = 32, 96

class AQ(A):
    def __init__(self): super().__init__(); self.vm = 0
    def __call__(self, s):
        if isinstance(s, (list, tuple)):
            for x in s: self(x)
            return
        if callable(s): s(); return
        for line in s.split("\n"):
            if line.strip().startswith(("buffer_", "global_")): self.vm += 1
        super().__call__(s)
    def mark(self): return self.vm
    def wait(self, mark):
        n = self.vm - mark
        assert 0 <= n <= 63, n
        self(f"s_waitcnt vmcnt({n})")

def unp(d, s, n):
    o = []
    for j in range(n): o += [f"v_lshlrev_b32 v{d+2*j}, 16, v{s+j}", f"v_and_b32 v{d+2*j+1}, 0xffff0000, v{s+j}"]
    return o
def pack(t, d, n): return [f"v_cvt_pk_bf16_f32 v{t+j}, v{d+2*j}, v{d+2*j+1}" for j in range(n)]
def rnd(d, t, n): return [f"v_cvt_pk_bf16_f32 v{d+j}, 0, v{d+j}" for j in range(2*n)]
def L(s): return [x for x in s.split("\n") if x.strip()]

def ldm(a): return a.mark()

class G:
    def __init__(self, opt):
        self.a = AQ(); self.n = 0; self.opt = opt; self.A2 = opt.get('map', 'a2') == 'a2'
    def o(self, k, d): return type(d)(self.opt.get(k, d))
    def lab(self, p="L"):
        self.n += 1; return f"{p}{self.n}"
    def stamp(self, idx):
        if self.opt.get("stamps"): self.a(f"s_memrealtime s[88:89]\ns_waitcnt lgkmcnt(0)\ns_mov_b32 s{18+idx}, s88")
    def stamp_flush(self):
        if not self.opt.get("stamps"): return
        a = self.a
        a("s_waitcnt vmcnt(0)"); self.stamp(13)
        for i in range(14): a(f"v_mov_b32 v{32+i}, s{18+i}")
        a(f"s_getreg_b32 s90, hwreg(HW_REG_XCC_ID)\nv_mov_b32 v46, s90\nv_mov_b32 v47, s91")
        a(f"s_lshl_b32 s90, s2, 2\ns_add_u32 s90, s90, s{sWV}\ns_lshl_b32 s90, s90, 6\ns_add_u32 s90, s90, {STAMP}\nv_mov_b32 v31, 0\ns_mov_b64 exec, 1")
        for i in range(4): a(f"buffer_store_dwordx4 {V(32+4*i)}, v31, {S(sWS)}, s90 offen offset:{16*i}")
        a("s_mov_b64 exec, -1")
    def srd(self, d, b, n): self.a(f"s_mov_b32 s{d}, s{b}\ns_and_b32 s{d+1}, s{b+1}, 0xffff\ns_mov_b32 s{d+2}, {n}\ns_mov_b32 s{d+3}, 0x20000")

    def start(self):
        a = self.a
        a("s_cmp_ge_u32 s2, 256\ns_cbranch_scc1 Kend")
        a("s_load_dwordx16 s[4:19], s[0:1], 0\ns_load_dwordx8 s[20:27], s[0:1], 64\ns_load_dwordx4 s[28:31], s[0:1], 96")
        if self.opt.get("stamps"): a("s_memrealtime s[90:91]")
        a(f"v_and_b32 v{vL}, 63, v0\nv_lshrrev_b32 v{vL16}, 6, v0\ns_getpc_b64 s[36:37]\nPC0:\nv_readfirstlane_b32 s{sWV}, v{vL16}\nv_lshlrev_b32 v{vL16}, 4, v{vL}")
        a("s_sub_u32 s36, s36, PC0-KSTART\ns_subb_u32 s37, s37, 0\ns_and_b32 s37, s37, 0xffff\ns_mov_b32 s38, KEND-KSTART\ns_mov_b32 s39, 0x20000")
        a(f"v_lshlrev_b32 v246, 7, v{vL}\ns_lshl_b32 s40, s{sWV}, 13")
        l = self.lab()
        a(f"s_cmp_ge_u32 s2, {self.o('cpfwg', 16)}\ns_cbranch_scc1 {l}\nbuffer_load_dword v241, v246, s[36:39], s40 offen\n{l}:"); a.vm -= 1
        a(f"v_cmp_gt_u32 vcc, 56, v{vL}\nv_mov_b32 v9, 0x80000000\ns_lshl_b32 s3, s2, 3\ns_lshl_b32 s41, s{sWV}, 1\nv_cndmask_b32 v9, v9, v{vL16}, vcc\nv_cndmask_b32 v10, 0, 1.0, vcc\nv_mov_b32 v11, 0x3b124925")
        a(f"s_add_u32 s3, s3, s41\ns_mul_i32 s41, s3, 896\nv_mov_b32 v31, 0\ns_mov_b32 s42, {FL_EP}\ns_waitcnt lgkmcnt(0)")
        self.srd(sX, 4, 1835008)
        a(f"buffer_load_dwordx4 {V(32)}, v9, {S(sX)}, s41 offen\nbuffer_load_dwordx4 {V(64)}, v9, {S(sX)}, s41 offen offset:896")
        self.srd(sWS, 30, WS_SZ)
        a(f"buffer_load_dword v247, v31, {S(sWS)}, s42 offen sc1")
        mx = a.mark()
        self.srd(sW1, 18, 7340032)
        self.w1_touch_prep()
        if self.o("tpos", 0) == 0: self.w1_touch(0)
        for d, b, n in ((sK, 6, 1835008), (sV, 8, 1835008), (sSHK, 10, 3584), (sSSMK, 12, 1835008), (sSSMD, 14, 896),
                        (sB1, 20, 3584), (sW2, 22, 7340032), (sB2, 24, 4096), (sOUT, 26, 1835008)): self.srd(d, b, n)
        if self.opt.get("stamps"):
            a("s_mov_b32 s91, s90")
            for i in range(14): a(f"s_mov_b32 s{18+i}, 0")
        a("s_and_b32 s4, s2, 7\ns_lshr_b32 s5, s2, 3\ns_mul_i32 s6, s5, 37\ns_lshr_b32 s6, s6, 8\ns_mul_i32 s7, s6, 7\ns_sub_u32 s7, s5, s7")
        a(f"s_cmp_lt_u32 s5, 28\ns_cselect_b32 s{sHAS2}, 1, 0")
        if self.A2:
            self.map2("s5", sDT2, sST)
            a(f"s_lshl_b32 s11, s9, 2\ns_add_u32 s12, s11, s6\ns_add_u32 s13, s11, s7\ns_cmp_lt_u32 s5, 21\ns_cselect_b32 s{sDT1}, s12, 3\ns_cselect_b32 s13, s7, s13")
            a(f"s_and_b32 s{sR1}, s13, 1\ns_mul_i32 s12, s10, 7\ns_add_u32 s{sFT}, s12, s13\ns_and_b32 s{sR2}, s{sST}, 1")
        else:
            a(f"s_mov_b32 s{sDT2}, s7\ns_lshl_b32 s8, s6, 3\ns_add_u32 s{sST}, s8, s4")
            a(f"s_and_b32 s9, s4, 1\ns_lshl_b32 s10, s9, 2\ns_add_u32 s10, s10, s7\ns_lshr_b32 s11, s4, 1\ns_add_u32 s11, s11, 24")
            a(f"s_cmp_lt_u32 s5, 21\ns_cselect_b32 s{sDT1}, s7, s10\ns_cselect_b32 s{sFT}, s{sST}, s11\ns_and_b32 s{sR1}, s6, 1\ns_and_b32 s{sR2}, s6, 1")
        if not self.o("rot", 1): a(f"s_mov_b32 s{sR1}, 0\ns_mov_b32 s{sR2}, 0")
        a(f"s_sub_u32 s12, 25, s9\ns_cmp_lt_u32 s5, s12\ns_cselect_b32 s{sHAS1}, 1, 0\ns_sub_u32 s14, s5, 28\ns_sub_u32 s15, s5, s12\ns_add_u32 s15, s15, 4\ns_cmp_ge_u32 s5, 28\ns_cselect_b32 s{sHI}, s14, s15")
        return mx
    def map2(self, sj, dd, ds):
        self.a(f"s_bfe_u32 s9, s2, 0x10002\ns_and_b32 s10, s2, 3\ns_lshl_b32 s11, s9, 2\ns_lshr_b32 s{dd}, {sj}, 3\ns_add_u32 s{dd}, s{dd}, s11\ns_and_b32 s{ds}, {sj}, 7\ns_add_u32 s11, s11, s{ds}")
        self.a(f"s_cmp_lt_u32 {sj}, 24\ns_cselect_b32 s{dd}, s{dd}, 3\ns_cselect_b32 s{ds}, s{ds}, s11\ns_lshl_b32 s11, s10, 3\ns_add_u32 s{ds}, s{ds}, s11")
    def w1_touch_prep2(self):
        a = self.a
        a(f"s_lshr_b32 s92, s2, 3\ns_lshl_b32 s92, s92, 2\ns_add_u32 s92, s92, s{sWV}\ns_mul_i32 s92, s92, 38\nv_add_u32 v244, s92, v{vL}")
        a(f"v_and_b32 v245, 127, v244\nv_bfe_u32 v246, v244, 7, 2\nv_lshl_add_u32 v245, v246, 9, v245\nv_lshrrev_b32 v246, 9, v244")
        a(f"v_and_b32 v243, {1 if self.o('rot', 1) else 0}, v246\nv_lshl_add_u32 v242, v243, 8, v245\nv_xor_b32 v243, 1, v243\nv_lshl_add_u32 v245, v243, 8, v245")
        a(f"v_mul_u32_u24 v242, 3584, v242\nv_mul_u32_u24 v245, 3584, v245\ns_and_b32 s93, s2, 3\ns_mul_i32 s93, s93, 7\nv_add_u32 v246, s93, v246")
        a(f"v_lshl_add_u32 v242, v246, 7, v242\nv_lshl_add_u32 v243, v246, 7, v245\nv_cmp_gt_u32 vcc, 3584, v244\nv_cmp_gt_u32 s[92:93], 38, v{vL}\ns_and_b64 vcc, vcc, s[92:93]\nv_mov_b32 v245, 0x80000000")
        a(f"v_cndmask_b32 v246, v245, v242, vcc\nv_cndmask_b32 v243, v245, v243, vcc")
    def w1_touch_prep(self):
        if self.A2: return self.w1_touch_prep2()
        a = self.a
        a(f"s_lshr_b32 s92, s2, 3\ns_lshl_b32 s92, s92, 2\ns_add_u32 s92, s92, s{sWV}\ns_mul_i32 s92, s92, 43\nv_add_u32 v244, s92, v{vL}")
        a(f"v_and_b32 v245, 255, v244\nv_bfe_u32 v246, v244, 8, 2\nv_lshl_add_u32 v245, v246, 9, v245\nv_mul_u32_u24 v245, 3584, v245\nv_lshrrev_b32 v246, 10, v244")
        a(f"s_and_b32 s93, s2, 7\ns_lshr_b32 s99, s93, 1\ns_add_u32 s99, s99, 24\nv_lshl_add_u32 v243, v246, 3, s93\nv_mov_b32 v242, s99\nv_cmp_eq_u32 vcc, 3, v246\nv_cndmask_b32 v243, v243, v242, vcc")
        a(f"v_lshl_add_u32 v246, v243, 7, v245\nv_cmp_gt_u32 vcc, 0x1000, v244\nv_cmp_gt_u32 s[92:93], 43, v{vL}\ns_and_b64 vcc, vcc, s[92:93]\nv_mov_b32 v245, 0x80000000\nv_cndmask_b32 v246, v245, v246, vcc")
    def w1_touch(self, half):
        if self.A2:
            v = 243 if half else 246
            self.a(f"s_mov_b32 s92, {128*3584}\nbuffer_load_dword v{244+half}, v{v}, {S(sW1)}, 0 offen\nbuffer_load_dword v{244+half}, v{v}, {S(sW1)}, s92 offen")
        else: self.a(f"s_mov_b32 s92, {half*256*3584}\nbuffer_load_dword v{244+half}, v246, {S(sW1)}, s92 offen")

    def ln_rowops(self, b, sr):
        X, F, Gd, T, M, RS, Vv, P = b, b + 4, b + 12, b + 20, b + 24, b + 26, b + 28, b + 29
        o = []
        def red():
            for m in ("row_shr:1 row_mask:0xf", "row_shr:2 row_mask:0xf", "row_shr:4 row_mask:0xf", "row_shr:8 row_mask:0xf", "row_bcast:15 row_mask:0xa", "row_bcast:31 row_mask:0xc"):
                o.append(f"v_add_f32_dpp v{T}, v{T}, v{T} {m} bank_mask:0xf")
            o.append(f"v_readlane_b32 s{sr}, v{T}, 63")
        def sub(): return [f"v_pk_add_f32 {P2(Gd+2*j)}, {P2(F+2*j)}, {P2(M)} op_sel_hi:[1,0] neg_lo:[0,1] neg_hi:[0,1]" for j in range(4)]
        def norm(first):
            o.extend([f"v_pk_add_f32 {P2(T)}, {P2(F)}, {P2(F+2)}", f"v_pk_add_f32 {P2(T+2)}, {P2(F+4)}, {P2(F+6)}",
                      f"v_pk_add_f32 {P2(T)}, {P2(T)}, {P2(T+2)}", f"v_add_f32 v{T}, v{T}, v{T+1}"])
            if not first: o.append(f"v_mul_f32 v{T}, v{T}, v10")
            red()
            o.append(f"v_mul_f32 v{M}, s{sr}, v11")
            o.extend(sub())
            o.append(f"v_pk_mul_f32 {P2(T)}, {P2(Gd)}, {P2(Gd)}")
            for j in range(1, 4): o.append(f"v_pk_fma_f32 {P2(T)}, {P2(Gd+2*j)}, {P2(Gd+2*j)}, {P2(T)}")
            o.extend([f"v_add_f32 v{T}, v{T}, v{T+1}", f"v_mul_f32 v{T}, v{T}, v10"])
            red()
            o.extend([f"v_mul_f32 v{Vv}, s{sr}, v11", f"v_cvt_pk_bf16_f32 v{M}, 0, v{M}", f"v_cvt_pk_bf16_f32 v{Vv}, 0, v{Vv}",
                      f"v_add_f32 v{Vv}, 0x3727c5ac, v{Vv}", f"v_cvt_pk_bf16_f32 v{Vv}, 0, v{Vv}", f"v_sqrt_f32 v{Vv}, v{Vv}"])
            o.extend(sub())
            o.extend([f"v_cvt_pk_bf16_f32 v{Vv}, 0, v{Vv}", f"v_rcp_f32 v{RS}, v{Vv}"])
            o.extend(rnd(Gd, 0, 4))
            o.extend([f"v_pk_mul_f32 {P2(F+2*j)}, {P2(Gd+2*j)}, {P2(RS)} op_sel_hi:[1,0]" for j in range(4)])
            if first: o.extend(rnd(F, 0, 4) + [f"v_mov_b32 v{b+30}, v{M}", f"v_mov_b32 v{b+31}, v{RS}"])
            else: o.extend(pack(X, F, 4))
        o.extend(unp(F, X, 4)); norm(True); norm(False)
        return o
    def ln_addr(self):
        a = self.a
        a(f"s_lshl_b32 s6, s{sWV}, 1\ns_mul_i32 s6, s6, {HSP}\ns_add_u32 s6, s6, {HS}\nv_add_u32 v12, s6, v{vL16}")
        a(f"v_bfe_u32 v13, v{vL}, 2, 2\nv_mul_u32_u24 v13, {HSP}, v13\nv_lshrrev_b32 v14, 4, v{vL}\nv_lshl_add_u32 v13, v14, 5, v13")
        a(f"v_and_b32 v15, 3, v{vL}\nv_lshl_add_u32 v13, v15, 3, v13\ns_lshl_b32 s6, s{sWV}, 7\ns_add_u32 s6, s6, {HS}\nv_add_u32 v13, s6, v13")
        a(f"v_lshlrev_b32 v14, 10, v14\nv_and_b32 v15, 15, v{vL}\nv_lshl_add_u32 v14, v15, 4, v14")
        a(f"s_lshr_b32 s6, s2, 2\ns_lshl_b32 s7, s{sWV}, 6\ns_add_u32 s6, s6, s7\ns_lshl_b32 s6, s6, 12\ns_and_b32 s7, s2, 3\ns_lshl_b32 s7, s7, 8\ns_add_u32 s6, s6, s7")
        a(f"s_add_u32 s7, s6, {4*64*4096}\ns_cmp_eq_u32 s{sWV}, 3\ns_cselect_b32 s7, {OOB}, s7\ns_lshl_b32 s5, s3, 3\ns_add_u32 s5, s5, {ST}")
    def ln_compute(self):
        a = self.a
        for x, y in zip(self.ln_rowops(32, 8), self.ln_rowops(64, 9)): a(x); a(y)
        a(f"ds_write_b128 v12, {V(32)}\nds_write_b128 v12, {V(64)} offset:{HSP}")
        a(f"v_mov_b64 v[60:61], v[94:95]\nv_mov_b64 v[58:59], v[62:63]")
        a("s_waitcnt lgkmcnt(0)\ns_barrier")
        a(f"ds_read_b64_tr_b16 v[36:37], v13\nds_read_b64_tr_b16 v[38:39], v13 offset:{4*HSP}")
        a(f"ds_read_b64_tr_b16 v[40:41], v13 offset:512\nds_read_b64_tr_b16 v[42:43], v13 offset:{4*HSP+512}")
        a(f"s_mov_b64 exec, 1\nbuffer_store_dwordx4 {V(58)}, v31, {S(sWS)}, s5 offen sc1\ns_mov_b64 exec, -1")
        a(f"s_waitcnt lgkmcnt(2)\nbuffer_store_dwordx4 {V(36)}, v14, {S(sWS)}, s6 offen sc1")
        a(f"s_waitcnt lgkmcnt(0)\nbuffer_store_dwordx4 {V(40)}, v14, {S(sWS)}, s7 offen sc1")

    KF, KT, SKF, KO, RB = 32, 72, 208, 240, (96, 124, 152, 180)
    def kv_addr(self):
        a = self.a
        a(f"v_and_b32 v19, 7, v0\nv_lshrrev_b32 v18, 3, v0\nv_lshlrev_b32 v20, 6, v19\nv_lshlrev_b32 v19, 4, v19\nv_mul_u32_u24 v21, 1792, v18\nv_add_u32 v21, v21, v19")
        a(f"s_and_b32 s12, s2, 7\ns_mul_i32 s8, s12, {64*896}\ns_lshl_b32 s9, s{sHI}, 7\ns_add_u32 s8, s8, s9\nv_add_u32 v21, s8, v21")
        a(f"v_mul_u32_u24 v22, {2*TP}, v18\nv_add_u32 v22, v22, v19\nv_add_u32 v22, {KVS}, v22")
        a(f"v_lshrrev_b32 v24, 4, v{vL}\nv_bfe_u32 v18, v{vL}, 1, 1\nv_lshl_add_u32 v18, v18, 2, v24\nv_bfe_u32 v23, v{vL}, 2, 2\nv_lshl_add_u32 v23, v18, 3, v23\nv_sub_u32 v23, 59, v23\nv_mul_u32_u24 v23, {TP}, v23")
        a(f"v_and_b32 v18, 1, v{vL}\nv_lshlrev_b32 v18, 3, v18\ns_lshl_b32 s8, s{sWV}, 5\ns_add_u32 s8, s8, {KVS}\nv_add3_u32 v23, v23, v18, s8")
        a(f"v_bfe_u32 v18, v{vL}, 3, 1\nv_lshl_add_u32 v24, v18, 2, v24\nv_and_b32 v18, 7, v{vL}\nv_mul_u32_u24 v18, {RP}, v18\nv_lshl_add_u32 v24, v24, 4, v18\nv_add_u32 v27, {8*RP}, v24")
        a(f"s_lshl_b32 s13, s{sHI}, 2\ns_add_u32 s13, s13, s{sWV}\ns_mul_i32 s13, s13, {16*RP}\ns_lshl_b32 s8, s12, 7\ns_sub_u32 s13, s13, s8\ns_add_u32 s13, s13, {KVT + 3968}")
        a(f"s_lshl_b32 s14, s{sHI}, 5\ns_add_u32 s14, s14, s12\ns_lshl_b32 s15, s{sHI}, 9")
    def kv_load(self, R, t):
        a = self.a
        for j in range(5):
            d = t * 8 * 64 * 896 + (j - 3) * 896
            a(f"v_add_u32 v18, {d}, v21" if d >= 0 else f"v_subrev_u32 v18, {-d}, v21")
            a(f"buffer_load_dwordx4 {V(R+4*j)}, v18, {S(sK)}, 0 offen")
            if j >= 3: a(f"buffer_load_dwordx4 {V(R+20+4*(j-3))}, v18, {S(sV)}, 0 offen")
        return a.mark()
    def kv_ops(self, R):
        KF, SF, O, T = self.KF, self.SKF, self.KO, self.KT
        o = unp(KF, R, 20)
        exact = self.o("ksx", 1)
        for tp in (3, 2, 1, 0):
            dst = O if (tp == 3 or not exact) else T
            for r in range(2):
                for e in range(0, 8, 2):
                    k = KF + 8 * (r + 3 - tp) + e; d = dst + 8 * r + e
                    o.append(f"v_pk_mul_f32 {P2(d)}, {P2(k)}, {P2(SF+8*tp+e)}" if (tp == 3 or exact) else f"v_pk_fma_f32 {P2(d)}, {P2(k)}, {P2(SF+8*tp+e)}, {P2(d)}")
            if exact:
                o += rnd(dst, R, 8)
                if tp != 3: o += [f"v_pk_add_f32 {P2(O+2*j)}, {P2(O+2*j)}, {P2(T+2*j)}" for j in range(8)] + rnd(O, R, 8)
        if not exact: o += rnd(O, R, 8)
        o += unp(T, R + 20, 8) + [f"v_pk_mul_f32 {P2(O+2*j)}, {P2(O+2*j)}, {P2(T+2*j)}" for j in range(8)] + pack(R, O, 8)
        return o
    def kv_out(self, t0):
        a = self.a
        for t in (t0, t0 + 1):
            R = self.RB[t]
            a(f"ds_write_b128 v22, {V(R)} offset:{t*64*TP}\nds_write_b128 v22, {V(R+4)} offset:{t*64*TP+TP}")
        a("s_waitcnt lgkmcnt(0)\ns_barrier")
        for t in (0, 1):
            for j in range(2):
                for h in range(2): a(f"ds_read_b64_tr_b16 {P2(32+8*t+4*j+2*h)}, v23 offset:{(t0+t)*64*TP + 16*j + 4*(1-h)*TP}")
        for k in range(4):
            a(f"s_waitcnt lgkmcnt({6-2*k})\nbuffer_store_dwordx4 {V(32+4*k)}, v{27 if k&1 else 24}, {S(sWS)}, s13 offen sc1")
            if k & 1: a("s_sub_u32 s13, s13, 1024")
        return a.mark()
    def helper(self, mh):
        a = self.a; RB = self.RB; SKR = self.KO; ml = {}
        nohelp = self.lab(); done = self.lab()
        a(f"s_cmp_ge_u32 s{sHI}, 7\ns_cbranch_scc1 {nohelp}")
        m0 = a.mark()
        for j in range(4): a(f"buffer_load_dwordx4 {V(SKR+4*j)}, v20, {S(sSHK)}, s15 offen offset:{16*j}")
        msk = a.mark()
        ml[1] = self.kv_load(RB[1], 1)
        if self.A2:
            a(f"v_lshrrev_b32 v28, 3, v{vL}\nv_lshlrev_b32 v28, 12, v28\nv_and_b32 v29, 7, v{vL}\nv_lshl_add_u32 v28, v29, 7, v28\nv_and_b32 v29, {1 if self.o('rot', 1) else 0}, v29\nv_mul_u32_u24 v29, {224*4096}, v29")
            a(f"v_add_u32 v17, {224*4096}, v28\nv_sub_u32 v17, v17, v29\nv_add_u32 v28, v28, v29")
            a(f"s_mul_i32 s16, s{sWV}, 448\ns_lshl_b32 s8, s{sHI}, 3\ns_add_u32 s16, s16, s8\ns_lshl_b32 s16, s16, 12\ns_and_b32 s8, s2, 3\ns_lshl_b32 s8, s8, 10\ns_add_u32 s16, s16, s8\ns_mov_b32 s17, s16")
        else:
            a(f"v_lshrrev_b32 v28, 2, v{vL}\nv_lshlrev_b32 v28, 12, v28\nv_and_b32 v29, 3, v{vL}\nv_lshl_add_u32 v28, v29, 10, v28")
            a(f"s_mul_i32 s16, s{sWV}, 448\ns_lshl_b32 s8, s{sHI}, 4\ns_add_u32 s16, s16, s8\ns_lshl_b32 s16, s16, 12\ns_lshl_b32 s8, s12, 7\ns_add_u32 s16, s16, s8")
        a.wait(m0); self.publish(FL_LN, "s_mov_b32 s8, s2"); self.stamp(2)
        a.wait(msk)
        for e in range(8):
            a(f"v_lshlrev_b32 v{self.SKF+e}, 16, v{SKR+2*e}\nv_and_b32 v{self.SKF+8+e}, 0xffff0000, v{SKR+2*e}")
            a(f"v_lshlrev_b32 v{self.SKF+16+e}, 16, v{SKR+2*e+1}\nv_and_b32 v{self.SKF+24+e}, 0xffff0000, v{SKR+2*e+1}")
        ml[2] = self.kv_load(RB[2], 2)
        a(self.kv_ops(RB[0])); self.stamp(4)
        ml[3] = self.kv_load(RB[3], 3)
        if self.A2:
            a(f"s_lshl_b32 s8, s{sHI}, 2\ns_add_u32 s8, s8, s{sWV}"); self.map2("s8", 92, 93); a("s_lshl_b32 s8, s92, 5\ns_add_u32 s8, s8, s93")
        else: a(f"s_lshl_b32 s8, s{sWV}, 3\ns_add_u32 s8, s8, s14")
        a(f"v_lshlrev_b32 v25, 7, v{vL}\ns_lshl_b32 s8, s8, 13\nbuffer_load_dword v26, v25, {S(sSSMK)}, s8 offen")
        a.wait(ml[1]); a(self.kv_ops(RB[1])); self.kv_out(0); self.stamp(5)
        a.wait(ml[3]); a(self.kv_ops(RB[2])); self.stamp(6)
        a(self.kv_ops(RB[3])); ms = self.kv_out(2); self.stamp(7)
        def w2t(k):
            if not self.A2: a(f"buffer_load_dword v29, v28, {S(sW2)}, s16 offen\ns_add_u32 s16, s16, {112*4096}")
            elif k < 4: a(f"buffer_load_dword v29, v28, {S(sW2)}, s16 offen\ns_add_u32 s16, s16, {56*4096}")
            else: a(f"buffer_load_dword v29, v17, {S(sW2)}, s17 offen\ns_add_u32 s17, s17, {56*4096}")
        w2t(0)
        a(f"s_lshl_b32 s8, s14, 7\ns_add_u32 s8, s8, {FL_KV}\ns_cmp_eq_u32 s{sWV}, 0\ns_cselect_b32 s8, s8, {OOB}\nv_mov_b32 v30, s{sTAG}\nv_lshlrev_b32 v31, 10, v{vL}")
        a.wait(ms)
        a(f"s_barrier\ns_mov_b64 exec, 15\nbuffer_store_dword v30, v31, {S(sWS)}, s8 offen sc1\ns_mov_b64 exec, -1")
        self.stamp(3)
        for k in range(1, 8 if self.A2 else 4): w2t(k)
        a(f"s_branch {done}\n{nohelp}:\ns_waitcnt vmcnt(0)"); self.publish(FL_LN, "s_mov_b32 s8, s2"); a(f"{done}:")

    def publish(self, base, sidx):
        a = self.a
        a(sidx)
        a(f"s_lshl_b32 s8, s8, 7\ns_add_u32 s8, s8, {base}\ns_cmp_eq_u32 s{sWV}, 0\ns_cselect_b32 s8, s8, {OOB}\nv_mov_b32 v30, s{sTAG}\nv_mov_b32 v31, 0")
        if self.o("pub0", 0): a("s_waitcnt vmcnt(0)")
        a(f"s_barrier\ns_mov_b64 exec, 1\nbuffer_store_dword v30, v31, {S(sWS)}, s8 offen sc1\ns_mov_b64 exec, -1")
    def poll_issue(self, base, n, sidx, vr, sr, lane=None):
        a = self.a
        a(sidx)
        a(f"s_lshl_b32 s{sr}, s8, 7\ns_add_u32 s{sr}, s{sr}, {base}")
        a(lane or f"v_min_u32 v{vr}, {n-1}, v{vL}")
        a(f"v_lshlrev_b32 v{vr}, 7, v{vr}")
        a(f"buffer_load_dword v{vr+1}, v{vr}, {S(sWS)}, s{sr} offen sc1")
        return a.mark()
    def poll_check(self, mark, vr, sr):
        a = self.a
        l, d = self.lab("P"), self.lab("Q")
        a.wait(mark)
        a(f"s_mov_b32 s9, 0\n{l}:\nv_cmp_ne_u32 vcc, s{sTAG}, v{vr+1}\ns_nop 4\ns_cbranch_vccz {d}")
        a(f"s_sleep {self.o('psleep', 4)}\nbuffer_load_dword v{vr+1}, v{vr}, {S(sWS)}, s{sr} offen sc1\ns_add_u32 s9, s9, 1\ns_cmp_lt_u32 s9, 0x40000\ns_waitcnt vmcnt(0)\ns_cbranch_scc1 {l}\n{d}:")
        a.vm -= 1
    def poll(self, base, n, sidx):
        self.poll_check(self.poll_issue(base, n, sidx, 30, 10), 30, 10)

    def kc_prep(self):
        o = L(f"s_lshl_b32 s15, s{sDT2}, 5\ns_add_u32 s15, s15, s{sST}\ns_lshl_b32 s13, s15, 2\ns_lshl_b32 s15, s15, 13")
        o += L(f"s_lshr_b32 s9, s{sWV}, 1\ns_and_b32 s12, s{sWV}, 1\ns_lshl_b32 s14, s9, 12\ns_add_u32 s14, s14, s15\ns_lshl_b32 s12, s12, 2\ns_add_u32 s14, s14, s12")
        o += L(f"s_mul_i32 s12, s{sWV}, {2*CP}\ns_add_u32 s12, s12, {KC+32}\ns_lshl_b32 s9, s9, 1\ns_add_u32 s13, s13, s9")
        o += L(f"v_bfe_u32 v19, v{vL}, 2, 1\nv_lshlrev_b32 v19, 12, v19\nv_mov_b32 v22, 0\ns_mov_b32 m0, s12")
        return o
    def kc_load(self):
        o = [f"buffer_load_dwordx2 v[20:21], v19, {S(sSSMK)}, s15 offen", f"buffer_load_ushort v11, v22, {S(sSSMD)}, s13 offen"]
        for p in range(2):
            if p: o += L(f"s_add_u32 s14, s14, 2\ns_add_u32 m0, s12, {CP}")
            for pc in range(4): o.append(f"buffer_load_dwordx4 v{vL16}, {S(sSSMK)}, s14 offen offset:{pc*1024} lds")
        return o
    def kc_fix(self):
        a = self.a
        a(f"v_and_b32 v19, 3, v{vL}\nv_lshlrev_b32 v22, 4, v19\nv_sub_u32 v22, 48, v22\nv_lshlrev_b64 v[26:27], v22, v[20:21]\nv_lshlrev_b64 v[26:27], 16, v[26:27]")
        a(f"v_mov_b64 v[20:21], 0\nv_mov_b64 v[22:23], 0\nv_mov_b64 v[24:25], 0\nv_and_b32 v19, 7, v{vL}\nv_mul_u32_u24 v19, {CP}, v19")
        a(f"s_mov_b64 exec, 0xff\nds_write_b128 v19, v[20:23] offset:{KC}\nds_write_b128 v19, v[24:27] offset:{KC+16}\ns_mov_b64 exec, -1")
    def ur_load(self):
        a = self.a
        a(f"s_lshl_b32 s8, s{sDT2}, 6\ns_lshl_b32 s9, s{sST}, 1\ns_add_u32 s8, s8, s9\ns_lshr_b32 s9, s{sWV}, 1\ns_add_u32 s8, s8, s9\ns_mul_i32 s8, s8, {RP}\ns_and_b32 s9, s{sWV}, 1\ns_lshl_b32 s9, s9, 11\ns_add_u32 s8, s8, s9\ns_add_u32 s8, s8, {KVT}")
        a(f"buffer_load_dwordx4 {V(240)}, v{vL16}, {S(sWS)}, s8 offen sc1\nbuffer_load_dwordx4 {V(244)}, v{vL16}, {S(sWS)}, s8 offen offset:1024 sc1")
    def ur_write(self):
        a = self.a
        a(f"s_lshr_b32 s8, s{sWV}, 1\ns_mul_i32 s8, s8, 4608\ns_and_b32 s9, s{sWV}, 1\ns_lshl_b32 s10, s9, 11\ns_add_u32 s10, s10, s8\nv_add_u32 v19, s10, v{vL16}")
        a(f"ds_write_b128 v19, {V(240)} offset:{UR}\nds_write_b128 v19, {V(244)} offset:{UR+1024}")
        a(f"s_lshl_b32 s9, s9, 8\ns_add_u32 s8, s8, s9\nv_add_u32 v19, s8, v{vL16}\nv_mov_b64 v[20:21], 0\nv_mov_b64 v[22:23], 0")
        a(f"s_mov_b64 exec, 0xffff\nds_write_b128 v19, v[20:23] offset:{UR+4096}\ns_mov_b64 exec, -1")
    def conv_addr(self):
        o = L(f"v_and_b32 v16, 15, v{vL}\nv_lshrrev_b32 v17, 4, v{vL}\nv_add_u32 v18, 1, v16\nv_and_b32 v166, 3, v18\nv_mul_u32_u24 v166, {CP}, v166\nv_and_b32 v18, 28, v18")
        o += L(f"v_lshl_add_u32 v18, v17, 3, v18\nv_lshl_add_u32 v166, v18, 1, v166")
        o += L(f"s_lshr_b32 s14, s{sWV}, 1\ns_and_b32 s15, s{sWV}, 1\ns_mul_i32 s12, s14, {4*CP}\ns_lshl_b32 s11, s15, 8\ns_add_u32 s12, s12, s11\ns_add_u32 s12, s12, {KC}\nv_add_u32 v166, s12, v166")
        o += L(f"v_lshlrev_b32 v18, 1, v16\nv_sub_u32 v18, v17, v18\nv_add_u32 v18, 30, v18\nv_lshlrev_b32 v167, 4, v18")
        o += L(f"s_mul_i32 s13, s14, 4608\ns_add_u32 s12, s13, s11\ns_add_u32 s12, s12, {UR}\nv_add_u32 v167, s12, v167")
        o += L(f"v_lshlrev_b32 v18, 2, v16\nv_add_u32 v18, v18, v17\nv_lshlrev_b32 v18, 3, v18\ns_lshl_b32 s11, s15, 11\ns_sub_u32 s13, s13, s11\ns_add_u32 s13, s13, {UR + 2*(2044-768)}\nv_sub_u32 v168, s13, v18")
        return o
    def conv(self, side, every=None):
        a = self.a
        CA, AS, BS = 32, 192, 64
        def reads(r):
            s = r & 1; o = []
            for k in range(8):
                o.append(f"ds_read_b64 {P2(AS+32*s+4*k)}, v166 offset:{64*(8*k+r)}")
                o.append(f"ds_read_b64 {P2(AS+32*s+4*k+2)}, v166 offset:{64*(8*k+r)+8}")
                o.append(f"ds_read_b128 {V(BS+32*s+4*k)}, v167 offset:{(256*(7-k)+32*r)*2}")
            return o
        a("s_waitcnt lgkmcnt(0)\ns_barrier")
        a(reads(0))
        n = 0
        for r in range(4):
            s = r & 1
            nxt = reads(r + 1) if r < 3 else []
            mf = sorted((pp, t - pp) for t in range(8) for pp in range(t + 1))
            a("s_waitcnt lgkmcnt(0)")
            for k, (pp, q) in enumerate(mf):
                c = V(CA+4*(pp+q)); cin = "0" if (r == 0 and pp == 0) else c
                a(f"v_mfma_f32_16x16x32_bf16 {c}, {V(AS+32*s+4*pp)}, {V(BS+32*s+4*q)}, {cin}")
                if k < len(nxt): a(nxt[k])
                if n in side: a(side[n])
                elif every: every(n, (1 if k < len(nxt) else 2) + self.o('cb', 0))
                n += 1
        self.stamp(12)
    def conv_epi(self, tail):
        a = self.a; CA, KR, KF = 32, 192, 200
        a(f"s_and_b32 s15, s{sWV}, 1")
        a(f"s_lshl_b32 s12, s{sWV}, 12\ns_add_u32 s12, s12, {XCHC}\nv_add_u32 v14, s12, v{vL16}\ns_xor_b32 s12, s{sWV}, 1\ns_lshl_b32 s12, s12, 12\ns_add_u32 s12, s12, {XCHC}\nv_add_u32 v15, s12, v{vL16}")
        for b in range(4): a(f"ds_read_b64 {P2(KR+2*b)}, v168 offset:{512*(3-b)}")
        l1, l2 = self.lab(), self.lab()
        a(f"s_barrier\ns_cmp_eq_u32 s15, 0\ns_cbranch_scc1 {l1}")
        for k in range(4): a(f"ds_write_b128 v14, {V(CA+4*k)} offset:{1024*k}")
        for k in range(8): a(f"v_mov_b64 {P2(CA+2*k)}, {P2(CA+16+2*k)}")
        a(f"s_branch {l2}\n{l1}:\ns_nop 7")
        for k in range(4): a(f"ds_write_b128 v14, {V(CA+16+4*k)} offset:{1024*k}")
        a(f"{l2}:")
        a(f"v_lshlrev_b32 v166, 16, v11\nv_lshlrev_b32 v167, 16, v11\ns_waitcnt lgkmcnt(4)")
        for b in range(4):
            a(f"v_and_b32 v{KF+4*b}, 0xffff0000, v{KR+1+2*b}\nv_lshlrev_b32 v{KF+1+4*b}, 16, v{KR+1+2*b}\nv_and_b32 v{KF+2+4*b}, 0xffff0000, v{KR+2*b}\nv_lshlrev_b32 v{KF+3+4*b}, 16, v{KR+2*b}")
        a("s_waitcnt lgkmcnt(0)\ns_barrier")
        for k in range(4): a(f"ds_read_b128 {V(64+4*k)}, v15 offset:{1024*k}")
        for j in range(8): a(f"v_pk_mul_f32 {P2(KF+2*j)}, {P2(KF+2*j)}, {P2(166)}")
        self.sprinkle(rnd(KF, 0, 8), 4, tail)
        a(f"v_bfe_u32 v16, v{vL}, 4, 1\nv_lshlrev_b32 v16, 9, v16\nv_and_b32 v17, 15, v{vL}\nv_lshl_add_u32 v16, v17, 5, v16\nv_lshrrev_b32 v17, 5, v{vL}\nv_lshl_add_u32 v16, v17, 4, v16")
        a(f"s_lshl_b32 s12, s{sDT2}, 6\ns_lshl_b32 s13, s{sST}, 1\ns_add_u32 s12, s12, s13\ns_lshr_b32 s13, s{sWV}, 1\ns_add_u32 s12, s12, s13\ns_mul_i32 s12, s12, {RP}\ns_lshl_b32 s13, s15, 11\ns_add_u32 s12, s12, s13\ns_add_u32 s12, s12, {YT}")
        a("s_waitcnt lgkmcnt(0)")
        for k in range(8): a(f"v_pk_add_f32 {P2(CA+2*k)}, {P2(CA+2*k)}, {P2(64+2*k)}")
        self.sprinkle(rnd(CA, 0, 8), 4, tail)
        for k in range(8): a(f"v_pk_add_f32 {P2(CA+2*k)}, {P2(CA+2*k)}, {P2(KF+2*k)}")
        a(pack(80, CA, 8))
        for pr in range(2):
            a(f"v_permlane16_swap_b32 v{80+4*pr}, v{82+4*pr}\nv_permlane16_swap_b32 v{81+4*pr}, v{83+4*pr}")
            a(f"buffer_store_dwordx4 {V(80+4*pr)}, v16, {S(sWS)}, s12 offen offset:{1024*pr} sc1")

    def wp_init(self, pitch, rows_per_wave, scol, srot):
        o = L(f"v_lshrrev_b32 v16, 3, v{vL}\nv_and_b32 v17, 7, v{vL}\nv_bfe_u32 v18, v{vL}, 4, 1\nv_lshlrev_b32 v18, 1, v18\nv_xor_b32 v17, v17, v18\nv_lshlrev_b32 v17, 4, v17")
        o += L(f"v_mul_u32_u24 v16, {pitch}, v16\nv_add_u32 v{vD}, v16, v17\nv_xor_b32 v17, 64, v17\nv_add_u32 v16, v16, v17")
        o += L(f"v_add_u32 v{vD+1}, {8*pitch-1024}, v16\nv_add_u32 v{vD+2}, {2*(8*pitch-1024)}, v{vD}\nv_add_u32 v{vD+3}, {3*(8*pitch-1024)}, v16")
        o += L(f"s_mul_i32 s{sWO}, s{sWV}, {rows_per_wave*pitch}\ns_lshl_b32 s{sWR}, s{scol}, 7\ns_add_u32 s{sWO}, s{sWO}, s{sWR}\ns_mul_i32 s{sWR}, s{srot}, {rows_per_wave//2*pitch}\ns_sub_u32 s{sWB}, {rows_per_wave//2*pitch}, s{sWR}\ns_add_u32 s{sWB}, s{sWB}, s{sWO}\ns_add_u32 s{sWO}, s{sWO}, s{sWR}")
        o += L(f"s_mul_i32 s{sWR}, s{sWV}, {RSLOTS*4096}\ns_add_u32 s{sWR}, s{sWR}, {RING}")
        return o
    def t_addr(self):
        a = self.a
        a(f"v_lshrrev_b32 v16, 4, v{vL}\nv_bfe_u32 v17, v{vL}, 2, 2\nv_and_b32 v18, 3, v{vL}\nv_lshlrev_b32 v19, 10, v16\nv_lshl_add_u32 v19, v17, 7, v19\nv_lshl_add_u32 v19, v18, 3, v19")
        a(f"s_mul_i32 s8, s{sWV}, {RSLOTS*4096}\ns_add_u32 s8, s8, {RING}\nv_add_u32 v19, s8, v19")
        a(f"v_lshrrev_b32 v17, 1, v17\nv_and_b32 v16, 1, v16\nv_lshl_add_u32 v16, v16, 1, v17")
        for j in range(4): a(f"s_add_u32 s8, s{sWV}, {j+1}\ns_and_b32 s8, s8, 3\nv_xor_b32 v17, s8, v16\nv_lshl_add_u32 v{vT+j}, v17, 5, v19")
    def wp_ops(self, srd, pitch, pos):
        return ([f"s_add_u32 m0, s{sWR}, {(pos % RSLOTS)*4096}"] + [f"buffer_load_dwordx4 v{vD+pc}, {S(srd)}, s{sWO} offen offset:{1024*pc} lds" for pc in range(4)]
                + [f"s_mov_b32 s{sWO}, s{sWB}" if pos == (7 if pitch == 3584 else 6) else f"s_add_u32 s{sWO}, s{sWO}, {32*pitch}"])
    def wp_issue(self, srd, pitch, pos):
        self.a(self.wp_ops(srd, pitch, pos)); return self.a.mark()
    def w_tr(self, pos):
        return [f"ds_read_b64_tr_b16 a[{16*pos+4*j+2*h}:{16*pos+4*j+2*h+1}], v{vT+j} offset:{(pos % RSLOTS)*4096+h*512}" for j in range(4) for h in range(2)]

    def wq_init(self, srd, pitch, n, lag=2, done=0):
        q = []; self.wqm = {}; self.safe = 0; self.used = 0
        for p in range(n + lag):
            if done <= p < n:
                o = self.wp_ops(srd, pitch, p); q += [("i", p, x) for x in o]
            if p >= lag: q += [("w", p - lag)] + [("t", p - lag, x) for x in self.w_tr(p - lag)]
        self.wq = q
    def wq_step(self, budget, vm_ok=True, force=False):
        a = self.a; vm = False
        while budget > 0 and self.wq:
            it = self.wq[0]
            if it[0] == "i":
                if it[1] >= self.safe + RSLOTS:
                    if not force: break
                    a("s_waitcnt lgkmcnt(0)"); self.safe = self.used; assert it[1] < self.safe + RSLOTS
                isvm = it[2].startswith("buffer_")
                if isvm and (vm or not vm_ok) and not force: break
                a(it[2]); vm |= isvm
                if "offset:3072" in it[2]: self.wqm[it[1]] = a.mark()
            elif it[0] == "w": a.wait(self.wqm[it[1]])
            else:
                a(it[2])
                if len(self.wq) == 1 or self.wq[1][0] != "t": self.used = it[1] + 1
            self.wq.pop(0); budget -= 1
        return vm
    def sprinkle(self, ops, every, fn):
        for k, x in enumerate(ops):
            self.a(x)
            if k % every == every - 1: fn()

    def red_addr(self):
        a = self.a
        for j in range(3):
            a(f"s_add_u32 s8, s{sWV}, {j+1}\ns_and_b32 s8, s8, 3\ns_mul_i32 s8, s8, {RSLOTS*4096}\ns_add_u32 s8, s8, {XIN+j*4096}\nv_add_u32 v{12+j}, s8, v{vL16}")
        a(f"s_mul_i32 s8, s{sWV}, {RSLOTS*4096}\ns_add_u32 s8, s8, {XIN}\nv_add_u32 v15, s8, v{vL16}")
    def gemm_pre(self): self.red_addr()
    def gemm(self, nsteps, w_is_A, hooks=None, fill=None, skew=3, after_first=None, late=None):
        DEPTH = self.o('depth', 4)
        a = self.a; marks = {}; hooks = hooks or {}; fill = fill or {}; q = []
        def adv(st): return f"s_mov_b32 s16, s{sHB}" if st == nsteps // 2 - 1 else "s_add_u32 s16, s16, 4096"
        def loads(st):
            for i in range(4): a(f"buffer_load_dwordx4 {V(HR+16*(st%DEPTH)+4*i)}, v{vL16}, {S(sWS)}, s16 offen offset:{1024*i} sc1")
            a(adv(st)); marks[st] = a.mark()
        gap = [9]
        def mf(st, i, j, extra=None):
            w = AR(16*st+4*j); h = V(HR+16*(st%DEPTH)+4*i); c = V(ACC+16*j+4*i)
            a(f"v_mfma_f32_16x16x32_bf16 {c}, {w if w_is_A else h}, {h if w_is_A else w}, {c if st else 0}")
            gap[0] += 1; budget = 2
            if extra:
                a(extra); budget -= len(extra)
                if "buffer_" in extra[0]: gap[0] = 0
            while budget > 0 and q:
                vm = callable(q[0]) or "buffer_" in q[0]
                if vm and gap[0] < self.o("vgap", 2): break
                a(q.pop(0)); budget -= 1
                if vm: gap[0] = 0
        for st in range(DEPTH): loads(st)
        if after_first: after_first()
        for st in range(nsteps - skew):
            if st in hooks: hooks[st]()
            q.extend(fill.get(st, []))
            a.wait(marks[st])
            if self.o("trunc", 0) and w_is_A and st % 3 == 0: self.stamp(6 + st // 3)
            if self.o("zoom2", 0) and not w_is_A and st % 2 == 0: self.stamp(st // 2)
            for i in range(4):
                for j in range(4):
                    ex = None
                    if j == 3 and st + DEPTH < nsteps:
                        ex = [f"buffer_load_dwordx4 {V(HR+16*(st%DEPTH)+4*i)}, v{vL16}, {S(sWS)}, s16 offen offset:{1024*i} sc1"] + ([adv(st + DEPTH)] if i == 3 else [])
                    mf(st, i, j, ex)
                    if ex and i == 3: marks[st + DEPTH] = ldm(a)
        for st in range(nsteps - skew, nsteps + 1):
            if st in hooks: hooks[st]()
            q.extend(fill.get(st, []))
        pend = []; last = False
        if self.o("trunc", 0) and w_is_A: self.stamp(11)
        if self.o("zoom2", 0) and not w_is_A: self.stamp(6)
        for j in range(4):
            k = 0
            if j == 1 and late: q.extend(late)
            for st in range(nsteps - skew, nsteps):
                if j == 0: a.wait(marks[st])
                for i in range(4):
                    k += 1
                    ds = pend.pop(0) if (pend and k >= 3 and k % 2 == 1) else None
                    mf(st, i, j, [ds] if ds else None)
            a(pend); pend = []
            if j < 3: pend = [f"ds_write_b128 v{12+j}, {V(ACC+16*j+4*i)} offset:{1024*i}" for i in range(4)]
        a(q)
    def red_finish(self):
        a = self.a
        a("s_waitcnt lgkmcnt(0)\ns_barrier")
        for k in range(3):
            for i in range(4): a(f"ds_read_b128 {V(112+16*k+4*i)}, v15 offset:{k*4096+1024*i}")
        for k in range(3):
            a(f"s_waitcnt lgkmcnt({4*(2-k)})")
            for i in range(8): a(f"v_pk_add_f32 {P2(96+2*i)}, {P2((80 if k == 0 else 96)+2*i)}, {P2(112+16*k+2*i)}")
    def g1_pre(self):
        a = self.a
        a(f"v_lshrrev_b32 v19, 4, v{vL}\nv_lshlrev_b32 v19, 3, v19\ns_lshl_b32 s8, s{sFT}, 7\ns_lshl_b32 s9, s{sWV}, 5\ns_add_u32 s8, s8, s9\nbuffer_load_dwordx2 v[28:29], v19, {S(sB1)}, s8 offen")
        a(f"v_bfe_u32 v9, v{vL}, 4, 1\nv_lshlrev_b32 v9, 10, v9\nv_and_b32 v17, 15, v{vL}\nv_lshl_add_u32 v9, v17, 4, v9\nv_lshrrev_b32 v17, 5, v{vL}\nv_lshl_add_u32 v9, v17, 8, v9")
        a(f"s_mul_i32 s17, s{sDT1}, 56\ns_lshl_b32 s9, s{sFT}, 1\ns_add_u32 s17, s17, s9\ns_lshr_b32 s9, s{sWV}, 1\ns_add_u32 s17, s17, s9\ns_lshl_b32 s17, s17, 12")
        a(f"s_and_b32 s9, s{sWV}, 1\ns_lshl_b32 s9, s9, 9\ns_add_u32 s17, s17, s9\ns_add_u32 s17, s17, {UF}")
    def g1_epilogue(self):
        o = []
        if self.o("urnd", 1): o += rnd(96, 128, 8)
        o += [f"v_pk_add_f32 {P2(96+2*k)}, {P2(96+2*k)}, {P2(160+2*(k&1))}" for k in range(8)]
        if self.o("urnd", 1): o += rnd(96, 128, 8)
        o += [f"v_pk_mul_f32 {P2(112+2*k)}, {P2(96+2*k)}, {P2(96+2*k)}" for k in range(8)]
        o += [f"v_pk_fma_f32 {P2(112+2*k)}, {P2(112+2*k)}, {P2(164)}, {P2(164)} op_sel:[0,1,0] op_sel_hi:[1,1,0]" for k in range(8)]
        o += [f"v_pk_mul_f32 {P2(112+2*k)}, {P2(112+2*k)}, {P2(96+2*k)}" for k in range(8)]
        o += [f"v_exp_f32 v{112+k}, v{112+k}" for k in range(16)]
        o += [f"v_pk_add_f32 {P2(112+2*k)}, {P2(112+2*k)}, 1.0 op_sel_hi:[1,0]" for k in range(8)]
        o += [f"v_rcp_f32 v{112+k}, v{112+k}" for k in range(16)]
        for pr in range(2):
            o += [f"v_pk_mul_f32 {P2(96+2*k)}, {P2(96+2*k)}, {P2(112+2*k)}" for k in range(4*pr, 4*pr+4)]
            o += pack(128+4*pr, 96+8*pr, 4)
            o += [f"v_permlane16_swap_b32 v{128+4*pr}, v{130+4*pr}", f"v_permlane16_swap_b32 v{129+4*pr}, v{131+4*pr}"]
            o += [f"buffer_store_dwordx4 {V(128+4*pr)}, v9, {S(sWS)}, s17 offen offset:{2048*pr} sc1"]
        return o
    def g1_consts(self):
        c1 = -2.0 * 0.7978845608028654 * 1.4426950408889634
        return unp(160, 28, 2) + [f"v_mov_b32 v164, {f2h(c1)}", f"v_mov_b32 v165, {f2h(c1*0.044715)}"]

    XF, SF = 224, 208
    def x_load(self):
        a = self.a
        a(f"v_and_b32 v17, 15, v{vL}\nv_bfe_u32 v18, v{vL}, 4, 1\nv_lshrrev_b32 v19, 5, v{vL}\nv_lshlrev_b32 v18, 5, v18\nv_lshl_add_u32 v18, v19, 4, v18")
        a(f"v_mul_u32_u24 v19, 896, v17\nv_add_u32 v10, v19, v18")
        a(f"s_lshl_b32 s8, s{sST}, 6\ns_lshl_b32 s9, s{sWV}, 4\ns_add_u32 s8, s8, s9\ns_mul_i32 s17, s8, 896\ns_lshl_b32 s9, s{sDT2}, 7\ns_add_u32 s17, s17, s9")
        a(f"buffer_load_dwordx4 {V(192)}, v10, {S(sX)}, s17 offen\nbuffer_load_dwordx4 {V(196)}, v10, {S(sX)}, s17 offen offset:64")
        a(f"v_lshlrev_b32 v19, 3, v17\ns_lshl_b32 s9, s8, 3\ns_add_u32 s9, s9, {ST}\nbuffer_load_dwordx2 v[248:249], v19, {S(sWS)}, s9 offen sc1")
        a(f"v_lshlrev_b32 v19, 1, v17\ns_lshl_b32 s9, s8, 1\nbuffer_load_ushort v29, v19, {S(sB2)}, s9 offen")
        a(f"v_lshrrev_b32 v19, 3, v0\nv_and_b32 v17, 7, v0\nv_lshlrev_b32 v17, 4, v17\nv_mul_u32_u24 v11, {RP}, v19\nv_add_u32 v11, v11, v17\nv_mul_u32_u24 v19, {TP}, v19\nv_add_u32 v9, v19, v17")
        a(f"v_bfe_u32 v17, v{vL}, 4, 1\nv_lshrrev_b32 v19, 5, v{vL}\nv_lshlrev_b32 v17, 4, v17\nv_lshl_add_u32 v17, v19, 3, v17\nv_bfe_u32 v19, v{vL}, 2, 2\nv_add_u32 v17, v17, v19\nv_mul_u32_u24 v17, {TP}, v17")
        a(f"v_and_b32 v19, 3, v{vL}\nv_lshlrev_b32 v19, 3, v19\ns_lshl_b32 s8, s{sWV}, 5\nv_add3_u32 v16, v17, v19, s8")
    def xn_ops(self):
        XF, SF = self.XF, self.SF
        o = ["v_xor_b32 v252, 0x80000000, v248", "v_xor_b32 v253, 0x80000000, v248", "v_mov_b32 v248, v249"]
        o += unp(XF, 192, 8) + [f"v_pk_add_f32 {P2(SF+2*j)}, {P2(XF+2*j)}, {P2(252)}" for j in range(8)] + rnd(SF, 192, 8)
        o += [f"v_pk_mul_f32 {P2(SF+2*j)}, {P2(SF+2*j)}, {P2(248)}" for j in range(8)] + rnd(SF, 192, 8)
        return o + ["v_lshlrev_b32 v28, 16, v29", "v_mov_b32 v20, 0xbfb8aa3b"]
    def z_load(self):
        a = self.a
        a(f"s_mul_i32 s8, s{sDT2}, {64*RP}\ns_lshl_b32 s9, s{sST}, 7\ns_add_u32 s8, s8, s9\ns_add_u32 s8, s8, {YT}\ns_add_u32 s9, s8, {32*RP}")
        a(f"buffer_load_dwordx4 {V(240)}, v11, {S(sWS)}, s8 offen sc1\nbuffer_load_dwordx4 {V(244)}, v11, {S(sWS)}, s9 offen sc1")
        return a.mark()
    def z_write(self): self.a(f"ds_write_b128 v9, {V(240)} offset:{YS}\nds_write_b128 v9, {V(244)} offset:{YS+32*TP}")
    def z_read(self):
        for pr in range(2):
            for h in range(2): self.a(f"ds_read_b64_tr_b16 {P2(240+4*pr+2*h)}, v16 offset:{YS+(32*pr+4*h)*TP}")
    def s_ops(self):
        SF = self.SF
        return unp(176, 240, 8) + [f"v_pk_mul_f32 {P2(SF+2*j)}, {P2(SF+2*j)}, {P2(176+2*j)}" for j in range(8)] + rnd(SF, 192, 8)
    def g2_epilogue(self):
        a = self.a; XF, SF = self.XF, self.SF
        if self.o("yrnd", 1): a(rnd(96, 128, 8))
        for k in range(8): a(f"v_pk_add_f32 {P2(96+2*k)}, {P2(96+2*k)}, {P2(28)} op_sel_hi:[1,0]")
        if self.o("yrnd", 1): a(rnd(96, 128, 8))
        for k in range(8): a(f"v_pk_mul_f32 {P2(112+2*k)}, {P2(96+2*k)}, {P2(20)} op_sel_hi:[1,0]")
        for k in range(16): a(f"v_exp_f32 v{112+k}, v{112+k}")
        for k in range(8): a(f"v_pk_add_f32 {P2(112+2*k)}, {P2(112+2*k)}, 1.0 op_sel_hi:[1,0]")
        for k in range(16): a(f"v_rcp_f32 v{112+k}, v{112+k}")
        for pr in range(2):
            for k in range(4*pr, 4*pr+4): a(f"v_pk_mul_f32 {P2(96+2*k)}, {P2(96+2*k)}, {P2(112+2*k)}")
            a(pack(128+4*pr, 96+8*pr, 4))
            a(f"v_permlane16_swap_b32 v{128+4*pr}, v{130+4*pr}\nv_permlane16_swap_b32 v{129+4*pr}, v{131+4*pr}")
            a(unp(96+8*pr, 128+4*pr, 4))
            for j in range(4*pr, 4*pr+4): a(f"v_pk_mul_f32 {P2(96+2*j)}, {P2(96+2*j)}, {P2(SF+2*j)}")
            a(rnd(96+8*pr, 128+4*pr, 4))
            for j in range(4*pr, 4*pr+4): a(f"v_pk_add_f32 {P2(96+2*j)}, {P2(96+2*j)}, {P2(XF+2*j)}")
            a(pack(128+4*pr, 96+8*pr, 4))
            a(f"buffer_store_dwordx4 {V(128+4*pr)}, v10, {S(sOUT)}, s17 offen offset:{64*pr} {self.o('oflags', '')}")

def gen(opt):
    g = G(opt); a = g.a
    mx = g.start()
    g.stamp(0)
    l1, l2 = g.lab(), g.lab()
    g.kv_addr()
    nv = a.mark() - mx
    a(f"s_cmp_eq_u32 s{sHAS1}, 0\ns_cbranch_scc0 {l1}"); g.kv_load(g.RB[0], 0); a(f"{l1}:"); a.vm -= 7
    if g.o("tpos", 0) == 1: g.w1_touch(0)
    g.t_addr(); g.ln_addr(); a(g.wp_init(3584, 512, sFT, sR1))
    if g.o("tpos2", 1) == 0: g.w1_touch(1)
    n = a.mark() - mx
    a(f"s_cmp_eq_u32 s{sHAS1}, 0\ns_cbranch_scc0 {l2}\ns_waitcnt vmcnt({n+7})\ns_branch {l2}x\n{l2}:\ns_waitcnt vmcnt({n})\n{l2}x:")
    if g.o("tpos2", 1) == 1: g.w1_touch(1)
    a(f"v_readfirstlane_b32 s{sTAG}, v247\ns_mul_i32 s{sTAG}, s{sTAG}, 0x9E3779B1\ns_add_u32 s{sTAG}, s{sTAG}, 0x7F4A7C15")
    g.ln_compute(); mh = a.mark()
    g.stamp(1)
    a(f"s_cmp_eq_u32 s{sHAS1}, 0\ns_cbranch_scc1 ROLEBC")
    NB = g.o("nb", 2); wm = {}
    for p in range(NB): wm[p] = g.wp_issue(sW1, 3584, p)
    g.g1_pre(); g.gemm_pre()
    a(f"s_lshl_b32 s16, s{sDT1}, 6\ns_lshl_b32 s8, s{sWV}, 4\ns_add_u32 s16, s16, s8\ns_lshl_b32 s16, s16, 12\ns_add_u32 s16, s16, {HF}")
    a(f"s_lshl_b32 s8, s{sR1}, 15\ns_sub_u32 s{sHB}, {8*4096}, s8\ns_add_u32 s{sHB}, s{sHB}, s16\ns_add_u32 s16, s16, s8")
    a.wait(mh); g.publish(FL_LN, "s_mov_b32 s8, s2")
    g.stamp(2)
    for p in range(NB, RSLOTS): wm[p] = g.wp_issue(sW1, 3584, p)
    st = {}
    PI = g.o("pi", 13)
    for p in range(10):
        a.wait(wm[p]); a(g.w_tr(p))
        a("s_waitcnt lgkmcnt(0)"); wm[p + RSLOTS] = g.wp_issue(sW1, 3584, p + RSLOTS)
        if p + RSLOTS == PI: mf = g.poll_issue(FL_LN, 64, f"s_lshl_b32 s8, s{sWV}, 6", 30, 10)
    g.stamp(3)
    g.poll_check(mf, 30, 10)
    g.stamp(4)
    def first1():
        for p in range(10, 16): a.wait(wm[p]); a(g.w_tr(p))
        a("s_waitcnt lgkmcnt(0)\ns_barrier")
    def kvf(): st["kvf"] = g.poll_issue(FL_KV, 8, f"s_lshl_b32 s8, s{sDT2}, 2\ns_add_u32 s8, s8, s{sWV}\ns_lshl_b32 s8, s8, 3", 30, 10)
    g.gemm(16, True, fill={2: g.g1_consts(), 3: g.wp_init(4096, 448, sST, sR2), 5: g.conv_addr(), 8: g.kc_prep()}, after_first=first1,
           late=g.kc_load() + [kvf])
    g.stamp(5)
    if g.o("trunc", 0): a("s_branch KFLUSH")
    UE = g.o("urearly", 1)
    if UE: g.poll_check(st["kvf"], 30, 10); g.red_finish(); g.ur_load(); mur = a.mark()
    else: g.red_finish()
    NE = g.o("ne", 2)
    ep = g.g1_epilogue(); pre = [x for p in range(NE) for x in g.wp_ops(sW2, 4096, p)]
    g.sprinkle(ep[:-12], max(1, len(ep[:-12]) // (len(pre) + 1)), lambda: a(pre.pop(0)) if pre else None); a(pre); a(ep[-12:])
    g.stamp(6)
    if not UE: g.poll_check(st["kvf"], 30, 10); a("s_barrier"); g.ur_load(); mur = a.mark()
    g.kc_fix()
    a.wait(mur); g.ur_write()
    a(f"s_mul_i32 s17, s{sDT1}, 28\ns_add_u32 s17, s17, s{sFT}")
    g.stamp(7)
    a("s_branch COMMON")
    a("ROLEBC:")
    g.helper(mh)
    a(f"s_cmp_eq_u32 s{sHAS2}, 0\ns_cbranch_scc1 KFLUSH")
    if g.o("trunc", 0): a("s_branch KFLUSH")
    a(g.conv_addr()); a(g.kc_prep()); a(g.kc_load()); a(g.wp_init(4096, 448, sST, sR2))
    a(f"s_sleep {g.o('bsleep', 16)}")
    g.poll(FL_KV, 32, f"s_lshl_b32 s8, s{sDT2}, 5")
    for p in range(NE): g.wp_issue(sW2, 4096, p)
    g.ur_load(); mur = a.mark()
    g.kc_fix(); a.wait(mur); g.ur_write()
    a("s_mov_b32 s17, 0x100")
    a("COMMON:")
    g.wq_init(sW2, 4096, 14, g.o("lag", 2), NE)
    for p in range(NE): g.wqm[p] = a.mark() - 2
    mu = a.mark(); vg = [9]
    def every(n, budget):
        vg[0] += 1
        if n >= g.o("wstart", 0) and g.wq_step(budget, vg[0] >= g.o("cvgap", 2)): vg[0] = 0
        if n % 36 == 35: g.safe = g.used
    def upoll():
        st["uf"] = g.poll_issue(FL_U, 7, f"s_mul_i32 s8, s{sDT2}, 28\ns_mul_i32 s9, s{sWV}, 7\ns_add_u32 s8, s8, s9", 30, 10)
        st["lf"] = g.poll_issue(FL_LN, 2, f"s_lshl_b32 s8, s{sST}, 2\ns_add_u32 s8, s8, s{sWV}\ns_lshl_b32 s8, s8, 1", 170, 11)
    g.conv({g.o("pubu", 44 if UE else 0): lambda: (a.wait(mu), g.publish(FL_U, "s_mov_b32 s8, s17")), g.o("upoll", 130): upoll}, every)
    print("w2 stream after conv: used", g.used, "items left", len(g.wq), file=sys.stderr)
    a(f"s_mul_i32 s16, s{sDT2}, 56\ns_mul_i32 s8, s{sWV}, 14\ns_add_u32 s16, s16, s8\ns_lshl_b32 s16, s16, 12\ns_add_u32 s16, s16, {UF}")
    a(f"s_mul_i32 s8, s{sR2}, {7*4096}\ns_sub_u32 s{sHB}, {7*4096}, s8\ns_add_u32 s{sHB}, s{sHB}, s16\ns_add_u32 s16, s16, s8")
    while any(it[0] == "i" for it in g.wq): g.wq_step(1, force=True)
    g.poll_check(st["uf"], 30, 10); g.poll_check(st["lf"], 170, 11)
    g.stamp(9)
    def first2():
        g.conv_epi(lambda: None); my = a.mark()
        g.stamp(8)
        g.x_load()
        g.wq_step(999, force=True)
        g.gemm_pre()
        a.wait(my); a("s_waitcnt lgkmcnt(0)")
        g.publish(FL_Y, f"s_lshl_b32 s8, s{sDT2}, 5\ns_add_u32 s8, s8, s{sST}")
    YA = g.o("ya", 6)
    def ya(): st["yf"] = g.poll_issue(FL_Y, 8, f"s_lshl_b32 s8, s{sDT2}, 3\ns_add_u32 s8, s8, s{sWV}\ns_lshl_b32 s8, s8, 2", 30, 10, lane=f"v_and_b32 v30, 3, v{vL}\nv_and_b32 v31, 4, v{vL}\nv_lshl_add_u32 v30, v31, 2, v30")
    def yb(): g.poll_check(st["yf"], 30, 10); st["z"] = g.z_load()
    def yc(): a.wait(st["z"]); g.z_write(); a("s_waitcnt lgkmcnt(0)\ns_barrier"); g.z_read(); a("s_waitcnt lgkmcnt(0)")
    g.gemm(14, False, hooks={YA: ya, YA + 2: yb, 11: yc}, fill={4: g.xn_ops(), 11: g.s_ops()}, after_first=first2)
    g.stamp(10)
    g.red_finish(); g.g2_epilogue()
    g.stamp(11)
    l = g.lab()
    a(f"s_or_b32 s8, s2, s{sWV}\ns_cmp_lg_u32 s8, 0\ns_cbranch_scc1 {l}\nv_mov_b32 v30, s{sTAG}\nv_mov_b32 v31, 0\ns_mov_b32 s8, {FL_EP}")
    a(f"s_mov_b64 exec, 1\nbuffer_store_dword v30, v31, {S(sWS)}, s8 offen sc1\ns_mov_b64 exec, -1\n{l}:")
    a("KFLUSH:"); g.stamp_flush(); a("Kend:")
    lines, n = hazard.fix(a.l)
    body = "\n".join(lines) + "\n"
    n = KN + "_kernel"
    txt = f"; @launch grid=(256,1,1) block=(256,1,1) lds={LDS_SZ}\n" + '.amdgcn_target "amdgcn-amd-amdhsa--gfx950"\n.text\n'
    txt += f".globl {n}\n.p2align 8\n.type {n},@function\n{n}:\nKSTART:\n" + body + "s_endpgm\nKEND:\n"
    txt += '.section .rodata,"a"\n.p2align 6\n' + kernel_desc(n, 512, 102, 256)
    return txt

if __name__ == "__main__":
    opt = dict(kv.split("=") for kv in sys.argv[2:])
    open(sys.argv[1], "w").write(gen(opt))
```

```python
import sys, struct
from asmlib import A, KN, kernel_desc
import hazard

HF, UF, KVT, YT, ST, FL = 0x0, 0x200000, 0x400000, 0x600000, 0x800000, 0x810000
WS_SZ = 0x1000000
FL_LN, FL_KV, FL_U, FL_Y, FL_EP = FL, FL + 0x10000, FL + 0x20000, FL + 0x30000, FL + 0x40000
STAMP = 0x900000
OOB = 0x40000000
FS_LN = int(__import__('os').environ.get('FS', 16))
import os
RP = int(os.environ.get('RP', 4096))
KC, UR, YS, HS, RING = 0, 33280, 42496, 33280, 51712
XCHC = 0
CP = 4160; HSP = 1040; TP = 144
RSLOTS = 6
KVS = RING
XIN = RING + 3 * 4096
LDS_SZ = RING + 4 * RSLOTS * 4096
sX, sK, sV, sSHK, sSSMK, sSSMD, sW1, sB1, sW2, sB2, sOUT, sWS = [32 + 4 * i for i in range(12)]
sWV, sDT1, sFT, sDT2, sST, sTAG, sHAS1, sHAS2 = 80, 81, 82, 83, 84, 85, 86, 87
sWK, sWB, sWR, sWO = 94, 95, 96, 97
sHI, sR1, sR2, sHB = 98, 94, 101, 3
def S(b): return f"s[{b}:{b+3}]"
def V(b, n=4): return f"v[{b}:{b+n-1}]" if n > 1 else f"v{b}"
def P2(r): return f"v[{r}:{r+1}]"
def AR(b, n=4): return f"a[{b}:{b+n-1}]"
def f2h(x): return "0x%08x" % struct.unpack("<I", struct.pack("<f", x))[0]
vL, vL16, vD, vT = 1, 2, 172, 5
ACC, HR = 32, 96

class AQ(A):
    def __init__(self): super().__init__(); self.vm = 0
    def __call__(self, s):
        if isinstance(s, (list, tuple)):
            for x in s: self(x)
            return
        if callable(s): s(); return
        for line in s.split("\n"):
            if line.strip().startswith(("buffer_", "global_")): self.vm += 1
        super().__call__(s)
    def mark(self): return self.vm
    def wait(self, mark):
        n = self.vm - mark
        assert 0 <= n <= 63, n
        self(f"s_waitcnt vmcnt({n})")

def unp(d, s, n):
    o = []
    for j in range(n): o += [f"v_lshlrev_b32 v{d+2*j}, 16, v{s+j}", f"v_and_b32 v{d+2*j+1}, 0xffff0000, v{s+j}"]
    return o
def pack(t, d, n): return [f"v_cvt_pk_bf16_f32 v{t+j}, v{d+2*j}, v{d+2*j+1}" for j in range(n)]
def rnd(d, t, n): return [f"v_cvt_pk_bf16_f32 v{d+j}, 0, v{d+j}" for j in range(2*n)]
def L(s): return [x for x in s.split("\n") if x.strip()]

def ldm(a): return a.mark()

def perm_d(n, b):
    d = []; left = n
    while left:
        k = min(b, left // 2); d += [k] * k + [-k] * k; left -= 2 * k
    return d

class G:
    def __init__(self, opt):
        self.a = AQ(); self.n = 0; self.opt = opt; self.A2 = opt.get('map', 'a1') == 'a2'
    def o(self, k, d): return type(d)(self.opt.get(k, d))
    def lab(self, p="L"):
        self.n += 1; return f"{p}{self.n}"
    def stamp(self, idx):
        if self.opt.get("stamps") == "2": self.a(f"s_memtime s[88:89]\ns_waitcnt lgkmcnt(0)\ns_mov_b32 s{18+idx}, s88")
        elif self.opt.get("stamps"): self.a(f"s_memrealtime s[88:89]\ns_waitcnt lgkmcnt(0)\ns_mov_b32 s{18+idx}, s88")
    def stamp_flush(self):
        if not self.opt.get("stamps"): return
        a = self.a
        a("s_waitcnt vmcnt(0)"); self.stamp(13)
        for i in range(14): a(f"v_mov_b32 v{32+i}, s{18+i}")
        a(f"s_getreg_b32 s90, hwreg(HW_REG_XCC_ID)\nv_mov_b32 v46, s90\nv_mov_b32 v47, s91")
        a(f"s_lshl_b32 s90, s2, 2\ns_add_u32 s90, s90, s{sWV}\ns_lshl_b32 s90, s90, 6\ns_add_u32 s90, s90, {STAMP}\nv_mov_b32 v31, 0\ns_mov_b64 exec, 1")
        for i in range(4): a(f"buffer_store_dwordx4 {V(32+4*i)}, v31, {S(sWS)}, s90 offen offset:{16*i}")
        a("s_mov_b64 exec, -1")
    def srd(self, d, b, n): self.a(f"s_mov_b32 s{d}, s{b}\ns_and_b32 s{d+1}, s{b+1}, 0xffff\ns_mov_b32 s{d+2}, {n}\ns_mov_b32 s{d+3}, 0x20000")

    def start(self):
        a = self.a
        a("s_cmp_ge_u32 s2, 256\ns_cbranch_scc1 Kend")
        a("s_load_dwordx16 s[4:19], s[0:1], 0\ns_load_dwordx8 s[20:27], s[0:1], 64\ns_load_dwordx4 s[28:31], s[0:1], 96")
        if self.opt.get("stamps"): a("s_memtime s[90:91]" if self.opt.get("stamps") == "2" else "s_memrealtime s[90:91]")
        a(f"v_and_b32 v{vL}, 63, v0\nv_lshrrev_b32 v{vL16}, 6, v0\ns_getpc_b64 s[36:37]\nPC0:\nv_readfirstlane_b32 s{sWV}, v{vL16}\nv_lshlrev_b32 v{vL16}, 4, v{vL}")
        a("s_sub_u32 s36, s36, PC0-KSTART\ns_subb_u32 s37, s37, 0\ns_and_b32 s37, s37, 0xffff\ns_mov_b32 s38, KEND-KSTART\ns_mov_b32 s39, 0x20000")
        CL = self.o("cl", 3)
        a(f"s_lshr_b32 s40, s2, 3\ns_lshl_b32 s40, s40, 2\ns_add_u32 s40, s40, s{sWV}\ns_mul_i32 s40, s40, {(2 if CL != 3 else 3)*128}\nv_lshlrev_b32 v246, 7, v{vL}")
        a(f"s_mov_b64 exec, {(1<<CL)-1}\nbuffer_load_dword v241, v246, s[36:39], s40 offen\ns_mov_b64 exec, -1"); a.vm -= 1
        a(f"v_cmp_gt_u32 vcc, 56, v{vL}\nv_mov_b32 v9, 0x80000000\ns_lshl_b32 s3, s2, 3\ns_lshl_b32 s41, s{sWV}, 1\nv_cndmask_b32 v9, v9, v{vL16}, vcc\nv_cndmask_b32 v10, 0, 1.0, vcc\nv_mov_b32 v11, 0x3b124925")
        a(f"s_add_u32 s3, s3, s41\ns_mul_i32 s41, s3, 896\nv_mov_b32 v31, 0\ns_mov_b32 s42, {FL_EP}\ns_waitcnt lgkmcnt(0)")
        self.srd(sX, 4, 1835008)
        a(f"buffer_load_dwordx4 {V(32)}, v9, {S(sX)}, s41 offen\nbuffer_load_dwordx4 {V(64)}, v9, {S(sX)}, s41 offen offset:896")
        self.srd(sWS, 30, WS_SZ)
        a(f"buffer_load_dword v247, v31, {S(sWS)}, s42 offen sc1")
        mx = a.mark()
        self.srd(sW1, 18, 7340032)
        self.w1_touch_prep()
        if self.o("tpos", 0) == 0: self.w1_touch(0)
        for d, b, n in ((sK, 6, 1835008), (sV, 8, 1835008), (sSHK, 10, 3584), (sSSMK, 12, 1835008), (sSSMD, 14, 896),
                        (sB1, 20, 3584), (sW2, 22, 7340032), (sB2, 24, 4096), (sOUT, 26, 1835008)): self.srd(d, b, n)
        if self.opt.get("stamps"):
            a("s_mov_b32 s91, s90")
            for i in range(14): a(f"s_mov_b32 s{18+i}, 0")
        a("s_and_b32 s4, s2, 7\ns_lshr_b32 s5, s2, 3\ns_mul_i32 s6, s5, 37\ns_lshr_b32 s6, s6, 8\ns_mul_i32 s7, s6, 7\ns_sub_u32 s7, s5, s7")
        a(f"s_cmp_lt_u32 s5, 28\ns_cselect_b32 s{sHAS2}, 1, 0")
        if self.A2:
            self.map2("s5", sDT2, sST)
            a(f"s_lshl_b32 s11, s9, 2\ns_add_u32 s12, s11, s6\ns_add_u32 s13, s11, s7\ns_cmp_lt_u32 s5, 21\ns_cselect_b32 s{sDT1}, s12, 3\ns_cselect_b32 s13, s7, s13")
            a(f"s_and_b32 s{sR1}, s13, 1\ns_mul_i32 s12, s10, 7\ns_add_u32 s{sFT}, s12, s13\ns_and_b32 s{sR2}, s{sST}, 1")
        else:
            a(f"s_mov_b32 s{sDT2}, s7\ns_lshl_b32 s8, s6, 3\ns_add_u32 s{sST}, s8, s4")
            a(f"s_and_b32 s9, s4, 1\ns_lshl_b32 s10, s9, 2\ns_add_u32 s10, s10, s7\ns_lshr_b32 s11, s4, 1\ns_add_u32 s11, s11, 24")
            a(f"s_cmp_lt_u32 s5, 21\ns_cselect_b32 s{sDT1}, s7, s10\ns_cselect_b32 s{sFT}, s{sST}, s11\ns_and_b32 s{sR1}, s6, 1\ns_and_b32 s{sR2}, s6, 1")
        if not self.o("rot", 0): a(f"s_mov_b32 s{sR1}, 0\ns_mov_b32 s{sR2}, 0")
        a(f"s_sub_u32 s12, 25, s9\ns_cmp_lt_u32 s5, s12\ns_cselect_b32 s{sHAS1}, 1, 0\ns_sub_u32 s14, s5, 28\ns_sub_u32 s15, s5, s12\ns_add_u32 s15, s15, 4\ns_cmp_ge_u32 s5, 28\ns_cselect_b32 s{sHI}, s14, s15")
        return mx
    def map2(self, sj, dd, ds):
        self.a(f"s_bfe_u32 s9, s2, 0x10002\ns_and_b32 s10, s2, 3\ns_lshl_b32 s11, s9, 2\ns_lshr_b32 s{dd}, {sj}, 3\ns_add_u32 s{dd}, s{dd}, s11\ns_and_b32 s{ds}, {sj}, 7\ns_add_u32 s11, s11, s{ds}")
        self.a(f"s_cmp_lt_u32 {sj}, 24\ns_cselect_b32 s{dd}, s{dd}, 3\ns_cselect_b32 s{ds}, s{ds}, s11\ns_lshl_b32 s11, s10, 3\ns_add_u32 s{ds}, s{ds}, s11")
    def w1_touch_prep2(self):
        a = self.a
        a(f"s_lshr_b32 s92, s2, 3\ns_lshl_b32 s92, s92, 2\ns_add_u32 s92, s92, s{sWV}\ns_mul_i32 s92, s92, 38\nv_add_u32 v244, s92, v{vL}")
        a(f"v_and_b32 v245, 127, v244\nv_bfe_u32 v246, v244, 7, 2\nv_lshl_add_u32 v245, v246, 9, v245\nv_lshrrev_b32 v246, 9, v244")
        a(f"v_and_b32 v243, {1 if self.o('rot', 0) else 0}, v246\nv_lshl_add_u32 v242, v243, 8, v245\nv_xor_b32 v243, 1, v243\nv_lshl_add_u32 v245, v243, 8, v245")
        a(f"v_mul_u32_u24 v242, 3584, v242\nv_mul_u32_u24 v245, 3584, v245\ns_and_b32 s93, s2, 3\ns_mul_i32 s93, s93, 7\nv_add_u32 v246, s93, v246")
        a(f"v_lshl_add_u32 v242, v246, 7, v242\nv_lshl_add_u32 v243, v246, 7, v245\nv_cmp_gt_u32 vcc, 3584, v244\nv_cmp_gt_u32 s[92:93], 38, v{vL}\ns_and_b64 vcc, vcc, s[92:93]\nv_mov_b32 v245, 0x80000000")
        a(f"v_cndmask_b32 v246, v245, v242, vcc\nv_cndmask_b32 v243, v245, v243, vcc")
    def w1_touch_prep3(self):
        a = self.a
        a(f"s_lshr_b32 s92, s2, 3\ns_lshl_b32 s92, s92, 2\ns_add_u32 s92, s92, s{sWV}\ns_mul_i32 s92, s92, 22\nv_add_u32 v244, s92, v{vL}\ns_and_b32 s93, s2, 7\ns_and_b32 s99, s2, 1")
        a(f"v_and_b32 v245, 63, v244\nv_bfe_u32 v246, v244, 6, 2\nv_lshl_add_u32 v245, v246, 9, v245\nv_add_u32 v245, 448, v245\nv_lshrrev_b32 v246, 8, v244\nv_lshl_add_u32 v246, v246, 3, s93")
        a(f"v_subrev_u32 v243, 768, v244\nv_and_b32 v242, 255, v243\nv_bfe_u32 v240, v243, 8, 2\nv_lshl_add_u32 v242, v240, 9, v242\ns_xor_b32 s92, s99, 1\ns_lshl_b32 s92, s92, 8\nv_add_u32 v242, s92, v242")
        a(f"v_and_b32 v240, 63, v243\nv_bfe_u32 v239, v243, 6, 2\nv_lshl_add_u32 v240, v239, 9, v240\nv_add_u32 v240, 448, v240\nv_cmp_gt_u32 vcc, 1792, v244\nv_cndmask_b32 v242, v240, v242, vcc")
        a(f"s_lshr_b32 s93, s93, 1\ns_add_u32 s93, s93, 24\nv_mov_b32 v240, s93\nv_cmp_gt_u32 vcc, 768, v244\nv_cndmask_b32 v245, v242, v245, vcc\nv_cndmask_b32 v246, v240, v246, vcc")
        a(f"v_mul_u32_u24 v245, 3584, v245\nv_lshl_add_u32 v246, v246, 7, v245\ns_lshl_b32 s92, s99, 8\ns_add_u32 s92, s92, 1792\nv_cmp_gt_u32 vcc, s92, v244\nv_cmp_gt_u32 s[92:93], 22, v{vL}\ns_and_b64 vcc, vcc, s[92:93]\nv_mov_b32 v245, 0x80000000\nv_cndmask_b32 v246, v245, v246, vcc")
    def w1_touch_prep(self):
        if self.o("drot", 1): return
        if self.A2: return self.w1_touch_prep2()
        a = self.a
        a(f"s_lshr_b32 s92, s2, 3\ns_lshl_b32 s92, s92, 2\ns_add_u32 s92, s92, s{sWV}\ns_mul_i32 s92, s92, 43\nv_add_u32 v244, s92, v{vL}")
        a(f"v_and_b32 v245, 255, v244\nv_bfe_u32 v246, v244, 8, 2\nv_lshl_add_u32 v245, v246, 9, v245\nv_mul_u32_u24 v245, 3584, v245\nv_lshrrev_b32 v246, 10, v244")
        a(f"s_and_b32 s93, s2, 7\ns_lshr_b32 s99, s93, 1\ns_add_u32 s99, s99, 24\nv_lshl_add_u32 v243, v246, 3, s93\nv_mov_b32 v242, s99\nv_cmp_eq_u32 vcc, 3, v246\nv_cndmask_b32 v243, v243, v242, vcc")
        a(f"v_lshl_add_u32 v246, v243, 7, v245\nv_cmp_gt_u32 vcc, 0x1000, v244\nv_cmp_gt_u32 s[92:93], 43, v{vL}\ns_and_b64 vcc, vcc, s[92:93]\nv_mov_b32 v245, 0x80000000\nv_cndmask_b32 v246, v245, v246, vcc")
    def w1_touch(self, half):
        if self.o("drot", 1): return
        if self.A2:
            v = 243 if half else 246
            self.a(f"s_mov_b32 s92, {128*3584}\nbuffer_load_dword v{244+half}, v{v}, {S(sW1)}, 0 offen\nbuffer_load_dword v{244+half}, v{v}, {S(sW1)}, s92 offen")
        else: self.a(f"s_mov_b32 s92, {half*256*3584}\nbuffer_load_dword v{244+half}, v246, {S(sW1)}, s92 offen")

    def w2_own_prep(self):
        o = L(f"v_lshlrev_b32 v169, 12, v{vL}\ns_lshr_b32 s92, s2, 3\ns_and_b32 s93, s92, 7\ns_lshl_b32 s93, s93, 2\ns_add_u32 s93, s93, s{sWV}\ns_mul_i32 s93, s93, {56*4096}")
        o += L(f"s_lshr_b32 s92, s92, 3\ns_lshl_b32 s92, s92, 3\ns_and_b32 s99, s2, 7\ns_add_u32 s92, s92, s99\ns_lshl_b32 s92, s92, 7\ns_add_u32 s93, s93, s92")
        return o
    def w2_own(self): self.a(f"s_mov_b32 exec_hi, 0xffffff\nbuffer_load_dword v169, v169, {S(sW2)}, s93 offen\ns_mov_b32 exec_hi, -1")

    def ln_rowops(self, b, sr):
        X, F, Gd, T, M, RS, Vv, P = b, b + 4, b + 12, b + 20, b + 24, b + 26, b + 28, b + 29
        o = []
        def red():
            for m in ("row_shr:1 row_mask:0xf", "row_shr:2 row_mask:0xf", "row_shr:4 row_mask:0xf", "row_shr:8 row_mask:0xf", "row_bcast:15 row_mask:0xa", "row_bcast:31 row_mask:0xc"):
                o.append(f"v_add_f32_dpp v{T}, v{T}, v{T} {m} bank_mask:0xf")
            o.append(f"v_readlane_b32 s{sr}, v{T}, 63")
        def sub(): return [f"v_pk_add_f32 {P2(Gd+2*j)}, {P2(F+2*j)}, {P2(M)} op_sel_hi:[1,0] neg_lo:[0,1] neg_hi:[0,1]" for j in range(4)]
        def norm(first):
            o.extend([f"v_pk_add_f32 {P2(T)}, {P2(F)}, {P2(F+2)}", f"v_pk_add_f32 {P2(T+2)}, {P2(F+4)}, {P2(F+6)}",
                      f"v_pk_add_f32 {P2(T)}, {P2(T)}, {P2(T+2)}", f"v_add_f32 v{T}, v{T}, v{T+1}"])
            if not first: o.append(f"v_mul_f32 v{T}, v{T}, v10")
            red()
            o.append(f"v_mul_f32 v{M}, s{sr}, v11")
            o.extend(sub())
            o.append(f"v_pk_mul_f32 {P2(T)}, {P2(Gd)}, {P2(Gd)}")
            for j in range(1, 4): o.append(f"v_pk_fma_f32 {P2(T)}, {P2(Gd+2*j)}, {P2(Gd+2*j)}, {P2(T)}")
            o.extend([f"v_add_f32 v{T}, v{T}, v{T+1}", f"v_mul_f32 v{T}, v{T}, v10"])
            red()
            o.extend([f"v_mul_f32 v{Vv}, s{sr}, v11", f"v_cvt_pk_bf16_f32 v{M}, 0, v{M}", f"v_cvt_pk_bf16_f32 v{Vv}, 0, v{Vv}",
                      f"v_add_f32 v{Vv}, 0x3727c5ac, v{Vv}", f"v_cvt_pk_bf16_f32 v{Vv}, 0, v{Vv}", f"v_sqrt_f32 v{Vv}, v{Vv}"])
            o.extend(sub())
            o.extend([f"v_cvt_pk_bf16_f32 v{Vv}, 0, v{Vv}", f"v_rcp_f32 v{RS}, v{Vv}"])
            o.extend(rnd(Gd, 0, 4))
            o.extend([f"v_pk_mul_f32 {P2(F+2*j)}, {P2(Gd+2*j)}, {P2(RS)} op_sel_hi:[1,0]" for j in range(4)])
            if first: o.extend(rnd(F, 0, 4) + [f"v_mov_b32 v{b+30}, v{M}", f"v_mov_b32 v{b+31}, v{RS}"])
            else: o.extend(pack(X, F, 4))
        o.extend(unp(F, X, 4)); norm(True); norm(False)
        return o
    def ln_addr(self):
        a = self.a
        a(f"s_lshl_b32 s6, s{sWV}, 1\ns_mul_i32 s6, s6, {HSP}\ns_add_u32 s6, s6, {HS}\nv_add_u32 v12, s6, v{vL16}")
        a(f"v_bfe_u32 v13, v{vL}, 2, 2\nv_mul_u32_u24 v13, {HSP}, v13\nv_lshrrev_b32 v14, 4, v{vL}\nv_lshl_add_u32 v13, v14, 5, v13")
        a(f"v_and_b32 v15, 3, v{vL}\nv_lshl_add_u32 v13, v15, 3, v13\ns_lshl_b32 s6, s{sWV}, 7\ns_add_u32 s6, s6, {HS}\nv_add_u32 v13, s6, v13")
        a(f"v_lshlrev_b32 v14, 10, v14\nv_and_b32 v15, 15, v{vL}\nv_lshl_add_u32 v14, v15, 4, v14")
        a(f"s_lshr_b32 s6, s2, 2\ns_lshl_b32 s7, s{sWV}, 6\ns_add_u32 s6, s6, s7\ns_lshl_b32 s6, s6, 12\ns_and_b32 s7, s2, 3\ns_lshl_b32 s7, s7, 8\ns_add_u32 s6, s6, s7")
        a(f"s_add_u32 s7, s6, {4*64*4096}\ns_cmp_eq_u32 s{sWV}, 3\ns_cselect_b32 s7, {OOB}, s7\ns_lshl_b32 s5, s3, 3\ns_add_u32 s5, s5, {ST}")
    def ln_compute(self):
        a = self.a
        for x, y in zip(self.ln_rowops(32, 8), self.ln_rowops(64, 9)): a(x); a(y)
        a(f"ds_write_b128 v12, {V(32)}\nds_write_b128 v12, {V(64)} offset:{HSP}")
        a(f"v_mov_b64 v[60:61], v[94:95]\nv_mov_b64 v[58:59], v[62:63]")
        a("s_waitcnt lgkmcnt(0)\ns_barrier")
        a(f"ds_read_b64_tr_b16 v[36:37], v13\nds_read_b64_tr_b16 v[38:39], v13 offset:{4*HSP}")
        a(f"ds_read_b64_tr_b16 v[40:41], v13 offset:512\nds_read_b64_tr_b16 v[42:43], v13 offset:{4*HSP+512}")
        a(f"s_mov_b64 exec, 1\nbuffer_store_dwordx4 {V(58)}, v31, {S(sWS)}, s5 offen sc1\ns_mov_b64 exec, -1")
        a(f"s_waitcnt lgkmcnt(2)\nbuffer_store_dwordx4 {V(36)}, v14, {S(sWS)}, s6 offen sc1")
        a(f"s_waitcnt lgkmcnt(0)\nbuffer_store_dwordx4 {V(40)}, v14, {S(sWS)}, s7 offen sc1")
    def publish_ln(self, mh): self.a.wait(mh); self.publish(FL_LN, "s_mov_b32 s8, s2")

    KF, KT, SKF, KO, RB = 32, 72, 208, 240, (96, 124, 152, 180)
    def kv_addr(self):
        a = self.a
        a(f"v_and_b32 v19, 7, v0\nv_lshrrev_b32 v18, 3, v0\nv_lshlrev_b32 v20, 6, v19\nv_lshlrev_b32 v19, 4, v19\nv_mul_u32_u24 v21, 1792, v18\nv_add_u32 v21, v21, v19")
        a(f"s_and_b32 s12, s2, 7\ns_mul_i32 s8, s12, {64*896}\ns_lshl_b32 s9, s{sHI}, 7\ns_add_u32 s8, s8, s9\nv_add_u32 v21, s8, v21")
        a(f"v_mul_u32_u24 v22, {2*TP}, v18\nv_add_u32 v22, v22, v19\nv_add_u32 v22, {KVS}, v22")
        a(f"v_lshrrev_b32 v24, 4, v{vL}\nv_bfe_u32 v18, v{vL}, 1, 1\nv_lshl_add_u32 v18, v18, 2, v24\nv_bfe_u32 v23, v{vL}, 2, 2\nv_lshl_add_u32 v23, v18, 3, v23\nv_sub_u32 v23, 59, v23\nv_mul_u32_u24 v23, {TP}, v23")
        a(f"v_and_b32 v18, 1, v{vL}\nv_lshlrev_b32 v18, 3, v18\ns_lshl_b32 s8, s{sWV}, 5\ns_add_u32 s8, s8, {KVS}\nv_add3_u32 v23, v23, v18, s8")
        a(f"v_bfe_u32 v18, v{vL}, 3, 1\nv_lshl_add_u32 v24, v18, 2, v24\nv_and_b32 v18, 7, v{vL}\nv_mul_u32_u24 v18, {RP}, v18\nv_lshl_add_u32 v24, v24, 4, v18\nv_add_u32 v27, {8*RP}, v24")
        a(f"s_lshl_b32 s13, s{sHI}, 2\ns_add_u32 s13, s13, s{sWV}\ns_mul_i32 s13, s13, {16*RP}\ns_lshl_b32 s8, s12, 7\ns_sub_u32 s13, s13, s8\ns_add_u32 s13, s13, {KVT + 3968}")
        a(f"s_lshl_b32 s14, s{sHI}, 5\ns_add_u32 s14, s14, s12\ns_lshl_b32 s15, s{sHI}, 9")
    def kv_load(self, R, t):
        a = self.a
        for j in range(5):
            d = t * 8 * 64 * 896 + (j - 3) * 896
            a(f"v_add_u32 v18, {d}, v21" if d >= 0 else f"v_subrev_u32 v18, {-d}, v21")
            a(f"buffer_load_dwordx4 {V(R+4*j)}, v18, {S(sK)}, 0 offen")
            if j >= 3: a(f"buffer_load_dwordx4 {V(R+20+4*(j-3))}, v18, {S(sV)}, 0 offen")
        return a.mark()
    def kv_ops(self, R):
        KF, SF, O, T = self.KF, self.SKF, self.KO, self.KT
        o = unp(KF, R, 20)
        exact = self.o("ksx", 1)
        for tp in (3, 2, 1, 0):
            dst = O if (tp == 3 or not exact) else T
            for r in range(2):
                for e in range(0, 8, 2):
                    k = KF + 8 * (r + 3 - tp) + e; d = dst + 8 * r + e
                    o.append(f"v_pk_mul_f32 {P2(d)}, {P2(k)}, {P2(SF+8*tp+e)}" if (tp == 3 or exact) else f"v_pk_fma_f32 {P2(d)}, {P2(k)}, {P2(SF+8*tp+e)}, {P2(d)}")
            if exact:
                o += rnd(dst, R, 8)
                if tp != 3: o += [f"v_pk_add_f32 {P2(O+2*j)}, {P2(O+2*j)}, {P2(T+2*j)}" for j in range(8)] + rnd(O, R, 8)
        if not exact: o += rnd(O, R, 8)
        o += unp(T, R + 20, 8) + [f"v_pk_mul_f32 {P2(O+2*j)}, {P2(O+2*j)}, {P2(T+2*j)}" for j in range(8)] + pack(R, O, 8)
        return o
    def kv_out(self, tiles):
        a = self.a
        for t in tiles:
            R = self.RB[t]
            a(f"ds_write_b128 v22, {V(R)} offset:{t*64*TP}\nds_write_b128 v22, {V(R+4)} offset:{t*64*TP+TP}")
        a("s_waitcnt lgkmcnt(0)\ns_barrier")
        n = len(tiles)
        for k, t in enumerate(tiles):
            for j in range(2):
                for h in range(2): a(f"ds_read_b64_tr_b16 {P2(32+8*k+4*j+2*h)}, v23 offset:{t*64*TP + 16*j + 4*(1-h)*TP}")
        for k in range(2 * n):
            a(f"s_waitcnt lgkmcnt({min(15, 4*n-2-2*k)})\nbuffer_store_dwordx4 {V(32+4*k)}, v{27 if k&1 else 24}, {S(sWS)}, s13 offen sc1")
            if k & 1: a("s_sub_u32 s13, s13, 1024")
        return a.mark()
    def helper_early(self):
        a = self.a
        self.kv_load(self.RB[0], 0)
        for j in range(4): a(f"buffer_load_dwordx4 {V(self.RB[3]+4*j)}, v20, {S(sSHK)}, s15 offen offset:{16*j}")
    def helper(self, mh):
        a = self.a; RB = self.RB; SKR = RB[3]; ml = {}
        nohelp = self.lab(); done = self.lab()
        a(f"s_cmp_ge_u32 s{sHI}, 7\ns_cbranch_scc1 {nohelp}")
        m0 = a.mark()
        ml[1] = self.kv_load(RB[1], 1)
        a(f"s_waitcnt vmcnt({a.mark() - m0 + 4})")
        for e in range(8):
            a(f"v_lshlrev_b32 v{self.SKF+e}, 16, v{SKR+2*e}\nv_and_b32 v{self.SKF+8+e}, 0xffff0000, v{SKR+2*e}")
            a(f"v_lshlrev_b32 v{self.SKF+16+e}, 16, v{SKR+2*e+1}\nv_and_b32 v{self.SKF+24+e}, 0xffff0000, v{SKR+2*e+1}")
        o = self.kv_ops(RB[0]); h = int(len(o) * self.o("lnp", 0.4))
        a(o[:h]); self.publish_ln(m0); self.stamp(2)
        ml[2] = self.kv_load(RB[2], 2)
        a(o[h:]); self.stamp(4)
        ml[3] = self.kv_load(RB[3], 3)
        a(f"s_lshl_b32 s8, s{sWV}, 3\ns_add_u32 s8, s8, s14\nv_lshlrev_b32 v25, 7, v{vL}\ns_lshl_b32 s8, s8, 13\nbuffer_load_dword v26, v25, {S(sSSMK)}, s8 offen")
        a.wait(ml[1]); a(self.kv_ops(RB[1]))
        if self.o("out2", 1): self.kv_out((0, 1))
        self.stamp(5)
        a.wait(ml[2]); a(self.kv_ops(RB[2])); self.stamp(6)
        a.wait(ml[3]); a(self.kv_ops(RB[3]))
        ms = self.kv_out((2, 3) if self.o("out2", 1) else (0, 1, 2, 3)); self.stamp(7)
        a(f"s_lshl_b32 s8, s14, 7\ns_add_u32 s8, s8, {FL_KV}\ns_cmp_eq_u32 s{sWV}, 0\ns_cselect_b32 s8, s8, {OOB}\nv_mov_b32 v30, s{sTAG}\nv_lshlrev_b32 v31, 10, v{vL}")
        a.wait(ms)
        a(f"s_barrier\ns_mov_b64 exec, 15\nbuffer_store_dword v30, v31, {S(sWS)}, s8 offen sc1\ns_mov_b64 exec, -1")
        self.stamp(3)
        a(f"s_branch {done}\n{nohelp}:"); self.publish_ln(a.mark()); a(f"{done}:")

    def publish(self, base, sidx):
        a = self.a
        a(sidx)
        a(f"s_mul_i32 s8, s8, {FS_LN if base == FL_LN else 128}\ns_add_u32 s8, s8, {base}\ns_cmp_eq_u32 s{sWV}, 0\ns_cselect_b32 s8, s8, {OOB}\nv_mov_b32 v30, s{sTAG}\nv_mov_b32 v31, 0")
        if self.o("pub0", 0): a("s_waitcnt vmcnt(0)")
        a(f"s_barrier\ns_mov_b64 exec, 1\nbuffer_store_dword v30, v31, {S(sWS)}, s8 offen sc1\ns_mov_b64 exec, -1")
    def poll_issue(self, base, n, sidx, vr, sr, lane=None):
        a = self.a
        a(sidx)
        fs = FS_LN if base == FL_LN else 128
        a(f"s_mul_i32 s{sr}, s8, {fs}\ns_add_u32 s{sr}, s{sr}, {base}")
        a(lane or f"v_min_u32 v{vr}, {n-1}, v{vL}")
        a(f"v_mul_u32_u24 v{vr}, {fs}, v{vr}")
        a(f"buffer_load_dword v{vr+1}, v{vr}, {S(sWS)}, s{sr} offen sc1")
        return a.mark()
    def poll_check(self, mark, vr, sr):
        a = self.a
        l, d = self.lab("P"), self.lab("Q")
        a.wait(mark)
        a(f"s_mov_b32 s9, 0\n{l}:\nv_cmp_ne_u32 vcc, s{sTAG}, v{vr+1}\ns_nop 4\ns_cbranch_vccz {d}")
        a(f"s_sleep {self.o('psleep', 4)}\nbuffer_load_dword v{vr+1}, v{vr}, {S(sWS)}, s{sr} offen sc1\ns_add_u32 s9, s9, 1\ns_cmp_lt_u32 s9, 0x40000\ns_waitcnt vmcnt(0)\ns_cbranch_scc1 {l}\n{d}:")
        a.vm -= 1
    def poll(self, base, n, sidx):
        self.poll_check(self.poll_issue(base, n, sidx, 30, 10), 30, 10)

    KD = 176
    def kc_load(self):
        K = self.KD
        o = L(f"s_lshl_b32 s15, s{sDT2}, 5\ns_add_u32 s15, s15, s{sST}\ns_lshl_b32 s13, s15, 2\ns_lshl_b32 s15, s15, 13\ns_lshl_b32 s14, s{sWV}, 11\ns_add_u32 s14, s14, s15")
        o += L(f"s_lshr_b32 s9, s{sWV}, 1\ns_mul_i32 s12, s9, {4*CP-4096}\ns_lshl_b32 s9, s9, 1\ns_add_u32 s13, s13, s9\ns_lshl_b32 s9, s{sWV}, 11\ns_add_u32 s12, s12, s9\ns_add_u32 s12, s12, {KC+32}")
        o += L(f"v_add_u32 v3, s12, v{vL16}\nv_bfe_u32 v19, v{vL}, 2, 1\nv_lshlrev_b32 v19, 12, v19\nv_mov_b32 v22, 0")
        for c in range(2):
            o += [f"buffer_load_dwordx4 {V(K+6*c)}, v{vL16}, {S(sSSMK)}, s14 offen offset:{1024*c}", f"buffer_load_dwordx2 {P2(K+6*c+4)}, v{vL16}, {S(sSSMK)}, s14 offen offset:{1024*c+16}"]
        o += [f"buffer_load_dwordx2 v[20:21], v19, {S(sSSMK)}, s15 offen", f"buffer_load_ushort v11, v22, {S(sSSMD)}, s13 offen"]
        return o
    def kc_build(self):
        o = []
        for c in range(2):
            D = self.KD + 6 * c; T = 188 + 8 * c
            o.append(f"ds_write_b128 v3, {V(D)} offset:{1024*c}")
            o += [f"v_alignbit_b32 v{T+k}, v{D+k+1}, v{D+k}, 16" for k in range(4)]
            o.append(f"ds_write_b128 v3, {V(T)} offset:{CP+1024*c}")
            o += [f"v_mov_b32 v{T+4+k}, v{D+1+k}" for k in range(4)]
            o.append(f"ds_write_b128 v3, {V(T+4)} offset:{2*CP+1024*c}")
            o += [f"v_alignbit_b32 v{D+3}, v{D+5}, v{D+4}, 16"] + [f"v_mov_b32 v{D+k}, v{T+1+k}" for k in range(3)]
            o.append(f"ds_write_b128 v3, {V(D)} offset:{3*CP+1024*c}")
        return o
    def kc_fix(self):
        a = self.a
        a(f"v_and_b32 v19, 3, v{vL}\nv_lshlrev_b32 v22, 4, v19\nv_sub_u32 v22, 48, v22\nv_lshlrev_b64 v[26:27], v22, v[20:21]\nv_lshlrev_b64 v[26:27], 16, v[26:27]")
        a(f"v_mov_b64 v[20:21], 0\nv_mov_b64 v[22:23], 0\nv_mov_b64 v[24:25], 0\nv_and_b32 v19, 7, v{vL}\nv_mul_u32_u24 v19, {CP}, v19")
        a(f"s_mov_b64 exec, 0xff\nds_write_b128 v19, v[20:23] offset:{KC}\nds_write_b128 v19, v[24:27] offset:{KC+16}\ns_mov_b64 exec, -1")
    def ur_load(self):
        a = self.a
        a(f"s_lshl_b32 s8, s{sDT2}, 6\ns_lshl_b32 s9, s{sST}, 1\ns_add_u32 s8, s8, s9\ns_lshr_b32 s9, s{sWV}, 1\ns_add_u32 s8, s8, s9\ns_mul_i32 s8, s8, {RP}\ns_and_b32 s9, s{sWV}, 1\ns_lshl_b32 s9, s9, 11\ns_add_u32 s8, s8, s9\ns_add_u32 s8, s8, {KVT}")
        a(f"buffer_load_dwordx4 {V(240)}, v{vL16}, {S(sWS)}, s8 offen sc1\nbuffer_load_dwordx4 {V(244)}, v{vL16}, {S(sWS)}, s8 offen offset:1024 sc1")
    def ur_write(self):
        a = self.a
        a(f"s_lshr_b32 s8, s{sWV}, 1\ns_mul_i32 s8, s8, 4608\ns_and_b32 s9, s{sWV}, 1\ns_lshl_b32 s10, s9, 11\ns_add_u32 s10, s10, s8\nv_add_u32 v19, s10, v{vL16}")
        a(f"ds_write_b128 v19, {V(240)} offset:{UR}\nds_write_b128 v19, {V(244)} offset:{UR+1024}")
        a(f"s_lshl_b32 s9, s9, 8\ns_add_u32 s8, s8, s9\nv_add_u32 v19, s8, v{vL16}\nv_mov_b64 v[20:21], 0\nv_mov_b64 v[22:23], 0")
        a(f"s_mov_b64 exec, 0xffff\nds_write_b128 v19, v[20:23] offset:{UR+4096}\ns_mov_b64 exec, -1")
    def conv_addr(self):
        o = L(f"v_and_b32 v16, 15, v{vL}\nv_lshrrev_b32 v17, 4, v{vL}\nv_add_u32 v18, 1, v16\nv_and_b32 v166, 3, v18\nv_mul_u32_u24 v166, {CP}, v166\nv_and_b32 v18, 28, v18")
        o += L(f"v_lshl_add_u32 v18, v17, 3, v18\nv_lshl_add_u32 v166, v18, 1, v166")
        o += L(f"s_lshr_b32 s14, s{sWV}, 1\ns_and_b32 s15, s{sWV}, 1\ns_mul_i32 s12, s14, {4*CP}\ns_lshl_b32 s11, s15, 8\ns_add_u32 s12, s12, s11\ns_add_u32 s12, s12, {KC}\nv_add_u32 v166, s12, v166")
        o += L(f"v_lshlrev_b32 v18, 1, v16\nv_sub_u32 v18, v17, v18\nv_add_u32 v18, 30, v18\nv_lshlrev_b32 v167, 4, v18")
        o += L(f"s_mul_i32 s13, s14, 4608\ns_add_u32 s12, s13, s11\ns_add_u32 s12, s12, {UR}\nv_add_u32 v167, s12, v167")
        o += L(f"v_lshlrev_b32 v18, 2, v16\nv_add_u32 v18, v18, v17\nv_lshlrev_b32 v18, 3, v18\ns_lshl_b32 s11, s15, 11\ns_sub_u32 s13, s13, s11\ns_add_u32 s13, s13, {UR + 2*(2044-768)}\nv_sub_u32 v168, s13, v18")
        return o
    def conv(self, side, every=None):
        a = self.a
        CA, AS, BS = 32, 192, 64
        def reads(r):
            s = r & 1; o = []
            for k in range(8):
                o.append(f"ds_read_b64 {P2(AS+32*s+4*k)}, v166 offset:{64*(8*k+r)}")
                o.append(f"ds_read_b64 {P2(AS+32*s+4*k+2)}, v166 offset:{64*(8*k+r)+8}")
                o.append(f"ds_read_b128 {V(BS+32*s+4*k)}, v167 offset:{(256*(7-k)+32*r)*2}")
            return o
        a("s_waitcnt lgkmcnt(0)\ns_barrier")
        a(reads(0))
        n = 0
        for r in range(4):
            s = r & 1
            nxt = reads(r + 1) if r < 3 else []
            mf = sorted((pp, t - pp) for t in range(8) for pp in range(t + 1))
            a("s_waitcnt lgkmcnt(0)")
            for k, (pp, q) in enumerate(mf):
                c = V(CA+4*(pp+q)); cin = "0" if (r == 0 and pp == 0) else c
                a(f"v_mfma_f32_16x16x32_bf16 {c}, {V(AS+32*s+4*pp)}, {V(BS+32*s+4*q)}, {cin}")
                if k < len(nxt): a(nxt[k])
                if n in side: a(side[n])
                elif every: every(n, (1 if k < len(nxt) else 2) + self.o('cb', 0))
                n += 1
        self.stamp(12)
    def conv_epi(self, tail):
        a = self.a; CA, KR, KF = 32, 192, 200
        for b in range(4): a(f"ds_read_b64 {P2(KR+2*b)}, v168 offset:{512*(3-b)}")
        l1, l2 = self.lab(), self.lab()
        a(f"s_barrier")
        if self.o("zoom4", 0): self.stamp(0)
        a(f"s_cmp_eq_u32 s15, 0\ns_cbranch_scc1 {l1}")
        for k in range(4): a(f"ds_write_b128 v25, {V(CA+4*k)} offset:{1024*k}")
        for k in range(8): a(f"v_mov_b64 {P2(CA+2*k)}, {P2(CA+16+2*k)}")
        a(f"s_branch {l2}\n{l1}:\ns_nop 7")
        for k in range(4): a(f"ds_write_b128 v25, {V(CA+16+4*k)} offset:{1024*k}")
        a(f"{l2}:")
        a(f"v_lshlrev_b32 v166, 16, v11\nv_lshlrev_b32 v167, 16, v11\ns_waitcnt lgkmcnt(4)")
        for b in range(4):
            a(f"v_and_b32 v{KF+4*b}, 0xffff0000, v{KR+1+2*b}\nv_lshlrev_b32 v{KF+1+4*b}, 16, v{KR+1+2*b}\nv_and_b32 v{KF+2+4*b}, 0xffff0000, v{KR+2*b}\nv_lshlrev_b32 v{KF+3+4*b}, 16, v{KR+2*b}")
        a("s_waitcnt lgkmcnt(0)\ns_barrier")
        if self.o("zoom4", 0): self.stamp(1)
        for k in range(4): a(f"ds_read_b128 {V(64+4*k)}, v26 offset:{1024*k}")
        for j in range(8): a(f"v_pk_mul_f32 {P2(KF+2*j)}, {P2(KF+2*j)}, {P2(166)}")
        self.sprinkle(rnd(KF, 0, 8), 4, tail)
        a("s_waitcnt lgkmcnt(0)")
        if self.o("zoom4", 0): self.stamp(2)
        for k in range(8): a(f"v_pk_add_f32 {P2(CA+2*k)}, {P2(CA+2*k)}, {P2(64+2*k)}")
        self.sprinkle(rnd(CA, 0, 8), 4, tail)
        for k in range(8): a(f"v_pk_add_f32 {P2(CA+2*k)}, {P2(CA+2*k)}, {P2(KF+2*k)}")
        if self.o("zoom4", 0): self.stamp(3)
        a(pack(80, CA, 8))
        for pr in range(2):
            a(f"v_permlane16_swap_b32 v{80+4*pr}, v{82+4*pr}\nv_permlane16_swap_b32 v{81+4*pr}, v{83+4*pr}")
            a(f"buffer_store_dwordx4 {V(80+4*pr)}, v27, {S(sWS)}, s12 offen offset:{1024*pr} sc1")

    def wp_init(self, pitch, rows_per_wave, scol, srot):
        o = L(f"v_lshrrev_b32 v16, 3, v{vL}\nv_and_b32 v17, 7, v{vL}\nv_bfe_u32 v18, v{vL}, 4, 1\nv_lshlrev_b32 v18, 1, v18\nv_xor_b32 v17, v17, v18\nv_lshlrev_b32 v17, 4, v17")
        o += L(f"v_mul_u32_u24 v16, {pitch}, v16\nv_add_u32 v{vD}, v16, v17\nv_xor_b32 v17, 64, v17\nv_add_u32 v16, v16, v17")
        o += L(f"v_add_u32 v{vD+1}, {8*pitch-1024}, v16\nv_add_u32 v{vD+2}, {2*(8*pitch-1024)}, v{vD}\nv_add_u32 v{vD+3}, {3*(8*pitch-1024)}, v16")
        o += L(f"s_mul_i32 s{sWO}, s{sWV}, {rows_per_wave*pitch}\ns_lshl_b32 s{sWR}, s{scol}, 7\ns_add_u32 s{sWO}, s{sWO}, s{sWR}\ns_mul_i32 s{sWB}, s{srot}, {32*pitch}\ns_mul_i32 s{sWR}, s{sWB}, {perm_d(rows_per_wave//32, self.o('blk', 4))[0]}\ns_add_u32 s{sWO}, s{sWO}, s{sWR}")
        if self.o("drot", 1): o += L(f"s_add_u32 s{sWB}, s{sWO}, {rows_per_wave*pitch}\ns_mul_i32 s{sWR}, s{sDT1 if pitch == 3584 else sDT2}, {64*pitch}\ns_add_u32 s{sWO}, s{sWO}, s{sWR}")
        o += L(f"s_mul_i32 s{sWR}, s{sWV}, {RSLOTS*4096}\ns_add_u32 s{sWR}, s{sWR}, {RING}")
        return o
    def t_addr(self):
        a = self.a
        a(f"v_lshrrev_b32 v16, 4, v{vL}\nv_bfe_u32 v17, v{vL}, 2, 2\nv_and_b32 v18, 3, v{vL}\nv_lshlrev_b32 v19, 10, v16\nv_lshl_add_u32 v19, v17, 7, v19\nv_lshl_add_u32 v19, v18, 3, v19")
        a(f"s_mul_i32 s8, s{sWV}, {RSLOTS*4096}\ns_add_u32 s8, s8, {RING}\nv_add_u32 v19, s8, v19")
        a(f"v_lshrrev_b32 v17, 1, v17\nv_and_b32 v16, 1, v16\nv_lshl_add_u32 v16, v16, 1, v17")
        for j in range(4): a(f"s_add_u32 s8, s{sWV}, {j+1}\ns_and_b32 s8, s8, 3\nv_xor_b32 v17, s8, v16\nv_lshl_add_u32 v{vT+j}, v17, 5, v19")
    def adv(self, sr, sru, unit, n, p):
        if self.o("drot", 1):
            if p & 1 == 0: return f"s_add_u32 s{sr}, s{sr}, {unit}"
            return f"s_add_u32 s{sr}, s{sr}, {unit}\ns_cmp_eq_u32 s{sr}, s{sru}\ns_cselect_b32 s100, {n*unit}, 0\ns_sub_u32 s{sr}, s{sr}, s100"
        d = perm_d(n, self.o("blk", 4)) + [0]; k = d[p + 1] - d[p]
        if k == 0 or p == n - 1 or not self.o("rot", 0): return f"s_add_u32 s{sr}, s{sr}, {unit}"
        return f"s_mul_i32 s100, s{sru}, {k}\ns_add_u32 s{sr}, s{sr}, {unit}\ns_add_u32 s{sr}, s{sr}, s100"
    def wp_ops(self, srd, pitch, pos):
        return ([f"s_add_u32 m0, s{sWR}, {(pos % RSLOTS)*4096}"] + [f"buffer_load_dwordx4 v{vD+pc}, {S(srd)}, s{sWO} offen offset:{1024*pc} lds" for pc in range(4)]
                + [self.adv(sWO, sWB, 32 * pitch, 16 if pitch == 3584 else 14, pos)])
    def wp_issue(self, srd, pitch, pos):
        self.a(self.wp_ops(srd, pitch, pos)); return self.a.mark()
    def w_tr(self, pos):
        return [f"ds_read_b64_tr_b16 a[{16*pos+4*j+2*h}:{16*pos+4*j+2*h+1}], v{vT+j} offset:{(pos % RSLOTS)*4096+h*512}" for j in range(4) for h in range(2)]

    def wq_init(self, srd, pitch, n, lag=2, issued=0, used=0):
        self.iq = [(p, x) for p in range(issued, n) for x in self.wp_ops(srd, pitch, p)]
        self.uq = [(p, x) for p in range(used, n) for x in self.w_tr(p)]
        self.wqm = {}; self.safe = used; self.used = used; self.lag = lag; self.waited = used - 1; self.covered = -1; self.wn = n
    def wq_left(self): return len(self.iq) + len(self.uq)
    def wq_step(self, budget, vm_ok=True, force=False, natural=False):
        a = self.a; vm = False; n = 0
        while n < budget and (self.iq or self.uq):
            p = self.uq[0][0] if self.uq else None
            nxt = self.iq[0][0] if self.iq else self.wn + self.lag
            if p is not None and p in self.wqm and (p <= self.waited or self.wqm[p] <= self.covered or (not natural and nxt >= p + 1 + self.lag) or (force and (not self.iq or nxt >= self.safe + RSLOTS) and p + RSLOTS <= nxt) or (force and not self.iq)):
                if p > self.waited:
                    if self.wqm[p] > self.covered: a.wait(self.wqm[p]); n += 1
                    self.waited = p
                a(self.uq.pop(0)[1]); n += 1
                if not self.uq or self.uq[0][0] != p: self.used = p + 1
                continue
            if not self.iq: break
            ip, x = self.iq[0]
            if ip >= self.safe + RSLOTS:
                if not force: break
                a("s_waitcnt lgkmcnt(0)"); self.safe = self.used; assert ip < self.safe + RSLOTS, (ip, self.safe)
            isvm = x.startswith("buffer_")
            if isvm and (vm or not vm_ok) and not force: break
            a(x); vm |= isvm; n += 1; self.iq.pop(0)
            if "offset:3072" in x: self.wqm[ip] = a.mark()
        return n, vm
    def sprinkle(self, ops, every, fn):
        for k, x in enumerate(ops):
            self.a(x)
            if k % every == every - 1: fn()

    def red_addr(self):
        a = self.a
        for j in range(3):
            a(f"s_add_u32 s8, s{sWV}, {j+1}\ns_and_b32 s8, s8, 3\ns_mul_i32 s8, s8, {RSLOTS*4096}\ns_add_u32 s8, s8, {XIN+j*4096}\nv_add_u32 v{12+j}, s8, v{vL16}")
        a(f"s_mul_i32 s8, s{sWV}, {RSLOTS*4096}\ns_add_u32 s8, s8, {XIN}\nv_add_u32 v15, s8, v{vL16}")
    def gemm_pre(self): self.red_addr()
    def gemm(self, nsteps, w_is_A, hooks=None, fill=None, skew=3, after_first=None, late=None):
        DEPTH = self.o('depth', 4); skew = self.o('skew', skew)
        a = self.a; marks = {}; hooks = hooks or {}; fill = fill or {}; q = []
        if self.o('nofill', 0) and w_is_A: post = [x for k in sorted(fill) for x in fill[k]] + late; fill = {}; late = None; hooks = {}
        else: post = []
        def adv(st): return self.adv(16, sHB, 4096, nsteps, st)
        def loads(st):
            for i in range(4): a(f"buffer_load_dwordx4 {V(HR+16*(st%DEPTH)+4*i)}, v{vL16}, {S(sWS)}, s16 offen offset:{1024*i} sc1")
            a(adv(st)); marks[st] = a.mark()
        gap = [9]
        def mf(st, i, j, extra=None):
            w = AR(16*st+4*j); h = V(HR+16*(st%DEPTH)+4*i); c = V(ACC+16*j+4*i)
            a(f"v_mfma_f32_16x16x32_bf16 {c}, {w if w_is_A else h}, {h if w_is_A else w}, {c if st else 0}")
            gap[0] += 1; budget = 2
            if extra:
                a(extra); budget -= len(extra)
                if "buffer_" in extra[0]: gap[0] = 0
            if budget > 0 and self.wq_left():
                n, vm = self.wq_step(budget, gap[0] >= self.o("vgap", 2) and not (extra is None and j == 2), natural=True); budget -= n
                if vm: gap[0] = 0
            while budget > 0 and q:
                vm = callable(q[0]) or "buffer_" in q[0]
                if vm and gap[0] < self.o("vgap", 2): break
                a(q.pop(0)); budget -= 1
                if vm: gap[0] = 0
        for st in range(DEPTH): loads(st)
        if after_first: after_first()
        for st in range(nsteps - skew):
            if st in hooks: hooks[st]()
            q.extend(fill.get(st, []))
            a.wait(marks[st]); self.covered = marks[st]
            while self.used <= st: self.wq_step(1, force=True)
            if self.safe != self.used: a("s_waitcnt lgkmcnt(0)"); self.safe = self.used
            if self.o("trunc", 0) and w_is_A and st % 3 == 0: self.stamp(6 + st // 3)
            if self.o("zoom2", 0) and not w_is_A and st % 2 == 0: self.stamp(st // 2)
            for i in range(4):
                for j in range(4):
                    ex = None
                    if j == 3 and st + DEPTH < nsteps:
                        ex = [f"buffer_load_dwordx4 {V(HR+16*(st%DEPTH)+4*i)}, v{vL16}, {S(sWS)}, s16 offen offset:{1024*i} sc1"] + ([adv(st + DEPTH)] if i == 3 else [])
                    mf(st, i, j, ex)
                    if ex and i == 3: marks[st + DEPTH] = ldm(a)
        for st in range(nsteps - skew, nsteps + 1):
            if st in hooks: hooks[st]()
            q.extend(fill.get(st, []))
        pend = []; last = False
        assert not self.wq_left() and self.safe == self.used, (self.wq_left(), self.safe, self.used)
        if self.o("trunc", 0) and w_is_A: self.stamp(11)
        if self.o("zoom2", 0) and not w_is_A: self.stamp(6)
        for j in range(4):
            k = 0
            if j == 1 and late: q.extend(late)
            for st in range(nsteps - skew, nsteps):
                if j == 0: a.wait(marks[st])
                for i in range(4):
                    k += 1
                    ds = pend.pop(0) if (pend and k >= 3 and (k % 2 == 1 or skew < 3)) else None
                    mf(st, i, j, [ds] if ds else None)
            a(pend); pend = []
            if j < 3: pend = [f"ds_write_b128 v{12+j}, {V(ACC+16*j+4*i)} offset:{1024*i}" for i in range(4)]
        a(q)
        if post: self.stamp(5); a('s_branch KFLUSH'); a(post)
    def red_finish(self):
        a = self.a
        a("s_waitcnt lgkmcnt(0)\ns_barrier")
        for k in range(3):
            for i in range(4): a(f"ds_read_b128 {V(112+16*k+4*i)}, v15 offset:{k*4096+1024*i}")
        for k in range(3):
            a(f"s_waitcnt lgkmcnt({4*(2-k)})")
            for i in range(8): a(f"v_pk_add_f32 {P2(96+2*i)}, {P2((80 if k == 0 else 96)+2*i)}, {P2(112+16*k+2*i)}")
    def g1_pre(self):
        a = self.a
        a(f"v_lshrrev_b32 v19, 4, v{vL}\nv_lshlrev_b32 v19, 3, v19\ns_lshl_b32 s8, s{sFT}, 7\ns_lshl_b32 s9, s{sWV}, 5\ns_add_u32 s8, s8, s9\nbuffer_load_dwordx2 v[28:29], v19, {S(sB1)}, s8 offen")
        a(f"v_bfe_u32 v9, v{vL}, 4, 1\nv_lshlrev_b32 v9, 10, v9\nv_and_b32 v17, 15, v{vL}\nv_lshl_add_u32 v9, v17, 4, v9\nv_lshrrev_b32 v17, 5, v{vL}\nv_lshl_add_u32 v9, v17, 8, v9")
        a(f"s_mul_i32 s17, s{sDT1}, 56\ns_lshl_b32 s9, s{sFT}, 1\ns_add_u32 s17, s17, s9\ns_lshr_b32 s9, s{sWV}, 1\ns_add_u32 s17, s17, s9\ns_lshl_b32 s17, s17, 12")
        a(f"s_and_b32 s9, s{sWV}, 1\ns_lshl_b32 s9, s9, 9\ns_add_u32 s17, s17, s9\ns_add_u32 s17, s17, {UF}")
    def g1_epilogue(self):
        o = []
        if self.o("urnd", 1): o += rnd(96, 128, 8)
        o += [f"v_pk_add_f32 {P2(96+2*k)}, {P2(96+2*k)}, {P2(160+2*(k&1))}" for k in range(8)]
        if self.o("urnd", 1): o += rnd(96, 128, 8)
        o += [f"v_pk_mul_f32 {P2(112+2*k)}, {P2(96+2*k)}, {P2(96+2*k)}" for k in range(8)]
        o += [f"v_pk_fma_f32 {P2(112+2*k)}, {P2(112+2*k)}, {P2(164)}, {P2(164)} op_sel:[0,1,0] op_sel_hi:[1,1,0]" for k in range(8)]
        o += [f"v_pk_mul_f32 {P2(112+2*k)}, {P2(112+2*k)}, {P2(96+2*k)}" for k in range(8)]
        o += [f"v_exp_f32 v{112+k}, v{112+k}" for k in range(16)]
        o += [f"v_pk_add_f32 {P2(112+2*k)}, {P2(112+2*k)}, 1.0 op_sel_hi:[1,0]" for k in range(8)]
        o += [f"v_rcp_f32 v{112+k}, v{112+k}" for k in range(16)]
        for pr in range(2):
            o += [f"v_pk_mul_f32 {P2(96+2*k)}, {P2(96+2*k)}, {P2(112+2*k)}" for k in range(4*pr, 4*pr+4)]
            o += pack(128+4*pr, 96+8*pr, 4)
            o += [f"v_permlane16_swap_b32 v{128+4*pr}, v{130+4*pr}", f"v_permlane16_swap_b32 v{129+4*pr}, v{131+4*pr}"]
            o += [f"buffer_store_dwordx4 {V(128+4*pr)}, v9, {S(sWS)}, s17 offen offset:{2048*pr} sc1"]
        return o
    def g1_consts(self):
        c1 = -2.0 * 0.7978845608028654 * 1.4426950408889634
        return unp(160, 28, 2) + [f"v_mov_b32 v164, {f2h(c1)}", f"v_mov_b32 v165, {f2h(c1*0.044715)}"]

    XF, SF = 224, 208
    def x_addr(self):
        o = L(f"v_and_b32 v17, 15, v{vL}\nv_bfe_u32 v18, v{vL}, 4, 1\nv_lshrrev_b32 v19, 5, v{vL}\nv_lshlrev_b32 v18, 5, v18\nv_lshl_add_u32 v18, v19, 4, v18")
        o += L(f"v_mul_u32_u24 v19, 896, v17\nv_add_u32 v10, v19, v18\nv_lshlrev_b32 v23, 3, v17\nv_lshlrev_b32 v24, 1, v17")
        o += L(f"s_lshl_b32 s14, s{sST}, 6\ns_lshl_b32 s9, s{sWV}, 4\ns_add_u32 s14, s14, s9\ns_mul_i32 s17, s14, 896\ns_lshl_b32 s9, s{sDT2}, 7\ns_add_u32 s17, s17, s9")
        o += L(f"s_lshl_b32 s13, s14, 3\ns_add_u32 s13, s13, {ST}\ns_lshl_b32 s14, s14, 1")
        o += L(f"v_lshrrev_b32 v19, 3, v0\nv_and_b32 v17, 7, v0\nv_lshlrev_b32 v17, 4, v17\nv_mul_u32_u24 v4, {RP}, v19\nv_add_u32 v4, v4, v17\nv_mul_u32_u24 v19, {TP}, v19\nv_add_u32 v9, v19, v17")
        o += L(f"v_bfe_u32 v17, v{vL}, 4, 1\nv_lshrrev_b32 v19, 5, v{vL}\nv_lshlrev_b32 v17, 4, v17\nv_lshl_add_u32 v17, v19, 3, v17\nv_bfe_u32 v19, v{vL}, 2, 2\nv_add_u32 v17, v17, v19\nv_mul_u32_u24 v17, {TP}, v17")
        o += L(f"v_and_b32 v19, 3, v{vL}\nv_lshlrev_b32 v19, 3, v19\ns_lshl_b32 s9, s{sWV}, 5\nv_add3_u32 v16, v17, v19, s9")
        return o
    def x_load(self):
        return [f"buffer_load_dwordx4 {V(192)}, v10, {S(sX)}, s17 offen", f"buffer_load_dwordx4 {V(196)}, v10, {S(sX)}, s17 offen offset:64",
                f"buffer_load_dwordx2 v[248:249], v23, {S(sWS)}, s13 offen sc1", f"buffer_load_ushort v29, v24, {S(sB2)}, s14 offen"]
    def conv_epi_addr(self):
        o = L(f"s_and_b32 s15, s{sWV}, 1\ns_lshl_b32 s12, s{sWV}, 12\ns_add_u32 s12, s12, {XCHC}\nv_add_u32 v25, s12, v{vL16}\ns_xor_b32 s12, s{sWV}, 1\ns_lshl_b32 s12, s12, 12\ns_add_u32 s12, s12, {XCHC}\nv_add_u32 v26, s12, v{vL16}")
        o += L(f"v_bfe_u32 v27, v{vL}, 4, 1\nv_lshlrev_b32 v27, 9, v27\nv_and_b32 v17, 15, v{vL}\nv_lshl_add_u32 v27, v17, 5, v27\nv_lshrrev_b32 v17, 5, v{vL}\nv_lshl_add_u32 v27, v17, 4, v27")
        o += L(f"s_lshl_b32 s12, s{sDT2}, 6\ns_lshl_b32 s9, s{sST}, 1\ns_add_u32 s12, s12, s9\ns_lshr_b32 s9, s{sWV}, 1\ns_add_u32 s12, s12, s9\ns_mul_i32 s12, s12, {RP}\ns_lshl_b32 s9, s15, 11\ns_add_u32 s12, s12, s9\ns_add_u32 s12, s12, {YT}")
        return o
    def xn_ops(self):
        XF, SF = self.XF, self.SF
        o = ["v_xor_b32 v252, 0x80000000, v248", "v_xor_b32 v253, 0x80000000, v248", "v_mov_b32 v248, v249"]
        o += unp(XF, 192, 8) + [f"v_pk_add_f32 {P2(SF+2*j)}, {P2(XF+2*j)}, {P2(252)}" for j in range(8)] + rnd(SF, 192, 8)
        o += [f"v_pk_mul_f32 {P2(SF+2*j)}, {P2(SF+2*j)}, {P2(248)}" for j in range(8)] + rnd(SF, 192, 8)
        return o + ["v_lshlrev_b32 v28, 16, v29", "v_mov_b32 v20, 0xbfb8aa3b"]
    def z_load(self):
        a = self.a
        a(f"s_mul_i32 s8, s{sDT2}, {64*RP}\ns_lshl_b32 s9, s{sST}, 7\ns_add_u32 s8, s8, s9\ns_add_u32 s8, s8, {YT}\ns_add_u32 s9, s8, {32*RP}")
        a(f"buffer_load_dwordx4 {V(240)}, v4, {S(sWS)}, s8 offen sc1\nbuffer_load_dwordx4 {V(244)}, v4, {S(sWS)}, s9 offen sc1")
        return a.mark()
    def z_write(self): self.a(f"ds_write_b128 v9, {V(240)} offset:{YS}\nds_write_b128 v9, {V(244)} offset:{YS+32*TP}")
    def z_read(self):
        for pr in range(2):
            for h in range(2): self.a(f"ds_read_b64_tr_b16 {P2(240+4*pr+2*h)}, v16 offset:{YS+(32*pr+4*h)*TP}")
    def s_ops(self):
        SF = self.SF
        return unp(176, 240, 8) + [f"v_pk_mul_f32 {P2(SF+2*j)}, {P2(SF+2*j)}, {P2(176+2*j)}" for j in range(8)] + rnd(SF, 192, 8)
    def g2_epilogue(self):
        a = self.a; XF, SF = self.XF, self.SF
        if self.o("yrnd", 1): a(rnd(96, 128, 8))
        for k in range(8): a(f"v_pk_add_f32 {P2(96+2*k)}, {P2(96+2*k)}, {P2(28)} op_sel_hi:[1,0]")
        if self.o("yrnd", 1): a(rnd(96, 128, 8))
        for k in range(8): a(f"v_pk_mul_f32 {P2(112+2*k)}, {P2(96+2*k)}, {P2(20)} op_sel_hi:[1,0]")
        for k in range(16): a(f"v_exp_f32 v{112+k}, v{112+k}")
        for k in range(8): a(f"v_pk_add_f32 {P2(112+2*k)}, {P2(112+2*k)}, 1.0 op_sel_hi:[1,0]")
        for k in range(16): a(f"v_rcp_f32 v{112+k}, v{112+k}")
        for pr in range(2):
            for k in range(4*pr, 4*pr+4): a(f"v_pk_mul_f32 {P2(96+2*k)}, {P2(96+2*k)}, {P2(112+2*k)}")
            a(pack(128+4*pr, 96+8*pr, 4))
            a(f"v_permlane16_swap_b32 v{128+4*pr}, v{130+4*pr}\nv_permlane16_swap_b32 v{129+4*pr}, v{131+4*pr}")
            a(unp(96+8*pr, 128+4*pr, 4))
            for j in range(4*pr, 4*pr+4): a(f"v_pk_mul_f32 {P2(96+2*j)}, {P2(96+2*j)}, {P2(SF+2*j)}")
            a(rnd(96+8*pr, 128+4*pr, 4))
            for j in range(4*pr, 4*pr+4): a(f"v_pk_add_f32 {P2(96+2*j)}, {P2(96+2*j)}, {P2(XF+2*j)}")
            a(pack(128+4*pr, 96+8*pr, 4))
            a(f"buffer_store_dwordx4 {V(128+4*pr)}, v10, {S(sOUT)}, s17 offen offset:{64*pr} {self.o('oflags', 'sc1')}")

def gen(opt):
    g = G(opt); a = g.a
    mx = g.start()
    g.stamp(0)
    l1, l2 = g.lab(), g.lab()
    g.kv_addr()
    nv = a.mark() - mx
    a(f"s_cmp_eq_u32 s{sHAS1}, 0\ns_cbranch_scc0 {l1}"); g.helper_early(); a(f"{l1}:"); a.vm -= 11
    if g.o("tpos", 0) == 1: g.w1_touch(0)
    DR = g.o("drot", 1); N0 = g.o("n0", 2) if DR else 0
    a(g.wp_init(3584, 512, sFT, sR1))
    g.wq_init(sW1, 3584, 16, lag=3)
    if DR:
        l3 = g.lab(); v0 = a.vm
        a(f"s_cmp_eq_u32 s{sHAS1}, 0\ns_cbranch_scc1 {l3}")
        while g.iq[0][0] < N0: g.wq_step(1, force=True)
        a(f"{l3}:")
    g.t_addr(); g.ln_addr()
    if DR: g.w1_touch_prep3()
    KA = g.o("kcat", 1)
    if g.o("tpos2", 0) == 0: g.w1_touch(1)
    n = a.mark() - mx
    a(f"s_cmp_eq_u32 s{sHAS1}, 0\ns_cbranch_scc0 {l2}\ns_waitcnt vmcnt({n-4*N0+11})\ns_branch {l2}x\n{l2}:\ns_waitcnt vmcnt({n})\n{l2}x:")
    if DR: a(f"buffer_load_dword v26, v246, {S(sW1)}, 0 offen")
    if g.o("tpos2", 0) == 1: g.w1_touch(1)
    a(f"v_readfirstlane_b32 s{sTAG}, v247\ns_mul_i32 s{sTAG}, s{sTAG}, 0x9E3779B1\ns_add_u32 s{sTAG}, s{sTAG}, 0x7F4A7C15")
    g.ln_compute(); mh = a.mark()
    g.stamp(1)
    a(f"s_cmp_eq_u32 s{sHAS1}, 0\ns_cbranch_scc1 ROLEBC")
    NB = g.o("nb", 1); wm = {}
    if KA < 0: a(g.kc_load())
    def upto(p):
        while g.iq and g.iq[0][0] < p: g.wq_step(1, force=True)
    upto(N0 + NB)
    g.g1_pre(); g.gemm_pre()
    a(f"s_lshl_b32 s16, s{sDT1}, 6\ns_lshl_b32 s8, s{sWV}, 4\ns_add_u32 s16, s16, s8\ns_lshl_b32 s16, s16, 12\ns_add_u32 s16, s16, {HF}")
    a(f"s_lshl_b32 s{sHB}, s{sR1}, 12\ns_mul_i32 s8, s{sHB}, {perm_d(16, g.o('blk', 4))[0]}\ns_add_u32 s16, s16, s8")
    if g.o("drot", 1): a(f"s_add_u32 s{sHB}, s16, {16*4096}\ns_lshl_b32 s8, s{sDT1}, 13\ns_add_u32 s16, s16, s8")
    g.publish_ln(mh)
    g.stamp(2)
    st = {}
    PI = g.o("pi", 14); PJ = g.o("pj", 16)
    upto(PI)
    mf = g.poll_issue(FL_LN, 64, f"s_lshl_b32 s8, s{sWV}, 6", 30, 10)
    upto(PJ)
    g.stamp(3)
    g.poll_check(mf, 30, 10); g.covered = mf
    g.stamp(4)
    def first1():
        while g.uq and g.uq[0][0] < PI: g.wq_step(1, natural=True, vm_ok=False)
    def kvf(): st["kvf"] = g.poll_issue(FL_KV, 8, f"s_lshl_b32 s8, s{sDT2}, 2\ns_add_u32 s8, s8, s{sWV}\ns_lshl_b32 s8, s8, 3", 30, 10)
    OWN = g.o("w2h", 0) == 0
    g.gemm(16, True, fill={max(KA, 1): (g.kc_load() if KA >= 0 else []) + g.g1_consts() + g.wp_init(4096, 448, sST, sR2) + g.conv_addr() + ([] if DR else g.w2_own_prep()), g.o('kcb', 9): g.kc_build()}, hooks={12: lambda: a('s_barrier'), g.o('kvfat', 13): kvf}, after_first=first1,
           late=([x for p in range(2) for x in g.wp_ops(sW2, 4096, p)] if DR else [g.w2_own] if g.o("w2at", 0) == 0 and OWN else []))
    g.stamp(5)
    if g.o("trunc", 0): a("s_branch KFLUSH")
    UE = g.o("urearly", 1)
    Z3 = g.o("zoom3", 0)
    def z(i):
        if Z3: g.stamp(i)
    if UE: g.poll_check(st["kvf"], 30, 10); z(0); g.red_finish(); z(1); g.ur_load(); mur = a.mark(); z(2)
    if g.o("w2at", 0) == 1: g.w2_own()
    if UE: pass
    else: g.red_finish()
    NE = g.o("ne", 2 if DR else 0)
    ep = g.g1_epilogue(); pre = [x for p in range(2 if DR else 0, NE) for x in g.wp_ops(sW2, 4096, p)]
    g.sprinkle(ep[:-12], max(1, len(ep[:-12]) // (len(pre) + 1)), lambda: a(pre.pop(0)) if pre else None); a(pre); z(3); a(ep[-12:])
    g.stamp(6)
    if not UE: g.poll_check(st["kvf"], 30, 10); a("s_barrier"); g.ur_load(); mur = a.mark()
    g.kc_fix()
    a.wait(mur); g.ur_write()
    a(f"s_mul_i32 s17, s{sDT1}, 28\ns_add_u32 s17, s17, s{sFT}")
    g.stamp(7)
    a("s_branch COMMON")
    a("ROLEBC:")
    g.helper(mh)
    a(f"s_cmp_eq_u32 s{sHAS2}, 0\ns_cbranch_scc1 KFLUSH")
    if g.o("trunc", 0): a("s_branch KFLUSH")
    a(g.kc_load()); a(g.conv_addr()); a(g.wp_init(4096, 448, sST, sR2)); g.gemm_pre()
    for p in range(NE): g.wp_issue(sW2, 4096, p)
    a(f"s_sleep {g.o('bsleep', 16)}")
    g.poll(FL_KV, 32, f"s_lshl_b32 s8, s{sDT2}, 5")
    g.ur_load(); mur = a.mark()
    a(g.kc_build()); g.kc_fix(); a.wait(mur); g.ur_write()
    a("s_mov_b32 s17, 0x100")
    a("COMMON:")
    g.wq_init(sW2, 4096, 14, g.o("lag", 3), NE)
    for p in range(NE): g.wqm[p] = a.mark() - 2
    mu = a.mark(); vg = [9]
    cq = []
    def every(n, budget):
        vg[0] += 1
        if n == g.o("pubu", 44 if UE else 0) + 1: cq.extend(g.conv_epi_addr() + g.x_addr())
        if cq and n % 2: a(cq.pop(0)); a(cq.pop(0) if cq else "")
        if n >= g.o("wstart", 0) and g.wq_step(budget, vg[0] >= g.o("cvgap", 2))[1]: vg[0] = 0
        if n % 36 == 35: g.safe = g.used
    def upoll():
        st["uf"] = g.poll_issue(FL_U, 7, f"s_mul_i32 s8, s{sDT2}, 28\ns_mul_i32 s9, s{sWV}, 7\ns_add_u32 s8, s8, s9", 30, 10)
        st["lf"] = g.poll_issue(FL_LN, 2, f"s_lshl_b32 s8, s{sST}, 2\ns_add_u32 s8, s8, s{sWV}\ns_lshl_b32 s8, s8, 1", 170, 11)
    ORD = g.o("ord", 1)
    side = {g.o("pubu", 44 if UE else 0): lambda: (a.wait(mu), g.publish(FL_U, "s_mov_b32 s8, s17"))}
    if ORD == 0: side[g.o("upoll", 130)] = upoll
    g.conv(side, every)
    a(cq)
    print("w2 stream after conv: used", g.used, "items left", len(g.iq), len(g.uq), file=sys.stderr)
    a(f"s_mul_i32 s16, s{sDT2}, 56\ns_mul_i32 s8, s{sWV}, 14\ns_add_u32 s16, s16, s8\ns_lshl_b32 s16, s16, 12\ns_add_u32 s16, s16, {UF}")
    a(f"s_lshl_b32 s{sHB}, s{sR2}, 12\ns_mul_i32 s8, s{sHB}, {perm_d(14, g.o('blk', 4))[0]}\ns_add_u32 s16, s16, s8")
    if g.o("drot", 1): a(f"s_add_u32 s{sHB}, s16, {14*4096}\ns_lshl_b32 s8, s{sDT2}, 13\ns_add_u32 s16, s16, s8")
    cnt = [0]
    def tail():
        g.wq_step(g.o("tb", 5), force=True); cnt[0] += 1
        if cnt[0] == g.o("upt", 6): upoll()
    if ORD == 1:
        g.conv_epi(tail); st["my"] = a.mark(); g.stamp(8)
        print("after epilogue: items left", len(g.iq), len(g.uq), file=sys.stderr)
    while g.iq and g.iq[0][0] < g.o("pk", 12): g.wq_step(1, force=True)
    g.poll_check(st["uf"], 30, 10); g.poll_check(st["lf"], 170, 11); g.covered = st["lf"]
    g.stamp(9)
    def first2():
        if ORD == 0: g.conv_epi(lambda: g.wq_step(g.o("tb", 5), natural=True, vm_ok=False)); st["my"] = a.mark(); g.stamp(8)
        a(g.x_load())
        while g.wq_step(1, natural=True, vm_ok=False)[0]: pass
    def puby(): a.wait(st["my"]); g.publish(FL_Y, f"s_lshl_b32 s8, s{sDT2}, 5\ns_add_u32 s8, s8, s{sST}")
    YA = g.o("ya", 6)
    def ya(): st["yf"] = g.poll_issue(FL_Y, 8, f"s_lshl_b32 s8, s{sDT2}, 3\ns_add_u32 s8, s8, s{sWV}\ns_lshl_b32 s8, s8, 2", 30, 10, lane=f"v_and_b32 v30, 3, v{vL}\nv_and_b32 v31, 4, v{vL}\nv_lshl_add_u32 v30, v31, 2, v30")
    def yb(): g.poll_check(st["yf"], 30, 10); st["z"] = g.z_load()
    def yc(): a.wait(st["z"]); g.z_write(); a("s_waitcnt lgkmcnt(0)\ns_barrier"); g.z_read(); a("s_waitcnt lgkmcnt(0)")
    g.gemm(14, False, hooks={g.o('puby', 1 if ORD else 2): puby, YA: ya, YA + 2: yb, 11: yc}, fill={4: g.xn_ops(), 11: g.s_ops()}, after_first=first2)
    g.stamp(10)
    g.red_finish()
    if g.o("zoom4", 0): g.stamp(4)
    g.g2_epilogue()
    g.stamp(11)
    l = g.lab()
    a(f"s_or_b32 s8, s2, s{sWV}\ns_cmp_lg_u32 s8, 0\ns_cbranch_scc1 {l}\nv_mov_b32 v30, s{sTAG}\nv_mov_b32 v31, 0\ns_mov_b32 s8, {FL_EP}")
    a(f"s_mov_b64 exec, 1\nbuffer_store_dword v30, v31, {S(sWS)}, s8 offen sc1\ns_mov_b64 exec, -1\n{l}:")
    a("KFLUSH:"); g.stamp_flush(); a("Kend:")
    lines, n = hazard.fix(a.l)
    body = "\n".join(lines) + "\n"
    n = KN + "_kernel"
    txt = f"; @launch grid=(256,1,1) block=(256,1,1) lds={LDS_SZ}\n" + '.amdgcn_target "amdgcn-amd-amdhsa--gfx950"\n.text\n'
    txt += f".globl {n}\n.p2align 8\n.type {n},@function\n{n}:\nKSTART:\n" + body + "s_endpgm\nKEND:\n"
    txt += '.section .rodata,"a"\n.p2align 6\n' + kernel_desc(n, 512, 102, 256)
    return txt

if __name__ == "__main__":
    opt = dict(kv.split("=") for kv in sys.argv[2:])
    open(sys.argv[1], "w").write(gen(opt))
```
